```python
import torch

def _softmax(x, axis=-1):
    return torch.softmax(x, dim=axis)
def _gelu(x):
    return torch.nn.functional.gelu(x, approximate="tanh")
def _silu(x):
    return torch.nn.functional.silu(x)
def _sigmoid(x):
    return torch.sigmoid(x)
def _layernorm(x, axis=-1, eps=1e-5):
    m = x.mean(dim=axis, keepdim=True)
    v = x.var(dim=axis, keepdim=True, unbiased=False)
    return (x - m) / torch.sqrt(v + eps)
def _scatter_add(tgt, idx, src, axis=0):
    return tgt.clone().index_add_(axis, idx, src)
def _segment_sum(src, seg, n):
    out = torch.zeros((n,) + src.shape[1:], dtype=src.dtype)
    return out.index_add_(0, seg, src)
def _pad(x, pw):
    flat = tuple(v for pair in reversed(pw) for v in pair)
    return torch.nn.functional.pad(x, flat)

kernel_name = 'recurrent_scan__linear_kernel_hedgehog__dense_activation_squared_relu__prompt'

def setup_inputs():

    _w = (lambda a: (lambda t: t.to(torch.bfloat16) if t.is_floating_point() else t)(torch.as_tensor(a)))
    def _A_setup():
        B, S, D, H = 1, 2048, 512, 32
        Dh = D // H
        return {
            "x": _w((lambda *s: torch.randn(*s, dtype=torch.bfloat16) * 0.05)(B, S, D)),
            "wqkv": _w((lambda *s: torch.randn(*s, dtype=torch.bfloat16) * 0.2)(D, 3 * D)),
            "w_phi": _w((lambda *s: torch.randn(*s, dtype=torch.bfloat16) * 0.2)(H, Dh, Dh) * (Dh ** -0.5)),
            "wo": _w((lambda *s: torch.randn(*s, dtype=torch.bfloat16) * 0.05)(D, D)),
        }
    _A_in = _A_setup()

    def _B_setup():
        B, S, D, F = 1, 2048, 512, 1792
        return {
            "x": _w((lambda *s: torch.randn(*s, dtype=torch.bfloat16) * 0.05)(B, S, D)),
            "w1": _w((lambda *s: torch.randn(*s, dtype=torch.bfloat16) * 0.05)(D, F)),
            "b1": _w((lambda *s: torch.randn(*s, dtype=torch.bfloat16) * 0.2)(F)),
            "w2": _w((lambda *s: torch.randn(*s, dtype=torch.bfloat16) * 0.05)(F, D)),
            "b2": _w((lambda *s: torch.randn(*s, dtype=torch.bfloat16) * 0.8)(D)),
        }
    _B_in = _B_setup()

    return {
        "A_x": _A_in["x"],
        "A_wqkv": _A_in["wqkv"],
        "A_w_phi": _A_in["w_phi"],
        "A_wo": _A_in["wo"],
        "B_x": _B_in["x"],
        "B_w1": _B_in["w1"],
        "B_b1": _B_in["b1"],
        "B_w2": _B_in["w2"],
        "B_b2": _B_in["b2"],
    }

def reference(A_x, A_wqkv, A_w_phi, A_wo, B_x, B_w1, B_b1, B_w2, B_b2):
    def _A_ref(x, wqkv, w_phi, wo):
        B, S, D = x.shape
        H = 32; Dh = D // H
        qkv = (lambda x, *d: x.permute(*d))((x @ wqkv).reshape(B, S, 3, H, Dh), 2, 0, 3, 1, 4)
        q, k, v = qkv[0], qkv[1], qkv[2]
        pq = torch.einsum("bhsd,hdf->bhsf", q, w_phi)
        pk = torch.einsum("bhsd,hdf->bhsf", k, w_phi)
        phi_q = torch.concatenate([_softmax(pq, axis=-1), _softmax(-pq, axis=-1)], axis=-1)
        phi_k = torch.concatenate([_softmax(pk, axis=-1), _softmax(-pk, axis=-1)], axis=-1)
        kv = torch.einsum("bhsf,bhsd->bhfd", phi_k, v)
        z  = torch.einsum("bhsf->bhf", phi_k)
        num = torch.einsum("bhqf,bhfd->bhqd", phi_q, kv)
        den = torch.einsum("bhqf,bhf->bhq", phi_q, z)[..., None] + 1e-6
        o = num / den
        return (lambda x, *d: x.permute(*d))(o, 0, 2, 1, 3).reshape(B, S, D) @ wo

    def _B_ref(x, w1, b1, w2, b2):
        h = torch.einsum("bsd,df->bsf", x, w1) + b1
        zero = torch.zeros_like(h)
        r = torch.where(h > zero, h, zero)
        h = r * r
        out = torch.einsum("bsf,fd->bsd", h, w2) + b2
        return out

    x = A_x
    xn = _layernorm(x, axis=-1)
    s = _A_ref(xn, A_wqkv, A_w_phi, A_wo)
    g = _silu(_B_ref(xn, B_w1, B_b1, B_w2, B_b2))
    return x + s * g
```

```python
import re

TRANS = ("v_exp_f32", "v_log_f32", "v_rcp_f32", "v_rsq_f32", "v_sqrt_f32", "v_sin_f32", "v_cos_f32")


def _regs(tok):
    tok = tok.strip()
    neg = tok.startswith("-")
    if neg:
        tok = tok[1:]
    m = re.match(r"^abs\((.*)\)$", tok)
    if m:
        tok = m.group(1)
    m = re.match(r"^([vsa])\[(\d+):(\d+)\]$", tok)
    if m:
        return m.group(1), set(range(int(m.group(2)), int(m.group(3)) + 1))
    m = re.match(r"^([vsa])(\d+)$", tok)
    if m:
        return m.group(1), {int(m.group(2))}
    if tok == "vcc":
        return "s", {106, 107}
    if tok == "m0":
        return "s", {124}
    if tok == "exec":
        return "s", {126, 127}
    return None, set()


class Ins:
    def __init__(self, text):
        self.text = text
        t = text.split(";")[0].strip()
        self.label = t.endswith(":")
        self.mn = t.split()[0] if t else ""
        rest = t[len(self.mn):].strip()
        ops = []
        depth = 0
        cur = ""
        for ch in rest:
            if ch == "[":
                depth += 1
            if ch == "]":
                depth -= 1
            if ch == "," and depth == 0:
                ops.append(cur.strip())
                cur = ""
            else:
                cur += ch
        if cur.strip():
            ops.append(cur.strip())
        mods = []
        if ops:
            parts = ops[-1].split()
            ops[-1] = parts[0]
            mods = parts[1:]
        self.ops = ops
        self.mods = mods
        self.vr, self.vw, self.sr, self.sw = set(), set(), set(), set()
        self.cls = "other"
        self.A = self.B = self.C = self.D = set()
        mn = self.mn

        def rd(tok):
            k, r = _regs(tok)
            if k == "v":
                self.vr |= r
            elif k == "s":
                self.sr |= r

        def wr(tok):
            k, r = _regs(tok)
            if k == "v":
                self.vw |= r
            elif k == "s":
                self.sw |= r

        if mn.startswith("v_mfma"):
            self.cls = "mfma"
            wr(ops[0]); rd(ops[1]); rd(ops[2]); rd(ops[3])
            self.D = _regs(ops[0])[1]
            self.A = _regs(ops[1])[1]; self.B = _regs(ops[2])[1]
            k, r = _regs(ops[3])
            self.C = r if k == "v" else set()
            self.passes = 8 if "32x32" in mn else 4
        elif mn.startswith("v_"):
            self.cls = "valu"
            if mn.startswith("v_permlane") and "swap" in mn:
                self.cls = "permlane"
                for o in ops[:2]:
                    rd(o); wr(o)
            elif mn.startswith("v_cmp"):
                wr(ops[0])
                for o in ops[1:]:
                    rd(o)
            else:
                wr(ops[0])
                for o in ops[1:]:
                    rd(o)
                if mn.startswith(("v_fmac", "v_dot2c")):
                    rd(ops[0])
                if mn.startswith(("v_add_co", "v_addc_co", "v_sub_co")):
                    wr(ops[1])
                if mn.startswith("v_cndmask") and len(ops) == 3:
                    self.sr |= {106, 107}
            if mn.startswith("v_dot"):
                self.cls = "dot"
            if mn.replace("_e32", "").replace("_e64", "") in TRANS:
                self.cls = "trans"
            self.dpp = "_dpp" in mn or any(m.startswith(("row_", "quad_perm")) for m in mods)
            self.readlane = mn.startswith(("v_readfirstlane", "v_readlane"))
        elif mn.startswith("ds_"):
            self.cls = "ds"
            if mn.startswith(("ds_read", "ds_bpermute", "ds_permute", "ds_swizzle")):
                wr(ops[0])
                for o in ops[1:]:
                    rd(o)
            else:
                for o in ops:
                    rd(o)
        elif mn.startswith(("buffer_", "global_")):
            self.cls = "vmem"
            self.lds = "lds" in mods or "_lds_" in mn
            if "load" in mn and not self.lds:
                wr(ops[0])
                for o in ops[1:]:
                    rd(o)
            else:
                for o in ops:
                    rd(o)
                if "atomic" in mn and "sc0" in mods:
                    wr(ops[0] if mn.startswith("buffer") else ops[0])
            self.widestore = ("store" in mn) and ("x4" in mn or "x3" in mn)
            if self.widestore:
                self.sdata = _regs(ops[0] if mn.startswith("buffer") else ops[1])[1]
        elif mn.startswith("s_"):
            self.cls = "salu"
            if mn.startswith(("s_cmp", "s_cbranch", "s_branch", "s_waitcnt", "s_barrier", "s_nop", "s_endpgm", "s_sleep", "s_setprio")):
                for o in ops:
                    rd(o)
            else:
                if ops:
                    wr(ops[0])
                for o in ops[1:]:
                    rd(o)

    def states(self):
        if self.label or not self.mn:
            return 0
        if self.mn == "s_nop":
            return int(self.ops[0], 0) + 1
        return 1


def required(p, c):
    need = 0
    valu_like = ("valu", "trans", "permlane", "dot")
    if p.cls in valu_like:
        if c.cls == "mfma" and (p.vw & c.vr):
            need = max(need, 3 if p.cls == "dot" else 2)
        if c.cls == "permlane" and (p.vw & c.vr):
            need = max(need, 2)
        if c.cls in valu_like and getattr(c, "dpp", False) and (p.vw & c.vr):
            need = max(need, 2)
        if c.cls in valu_like and getattr(c, "readlane", False) and (p.vw & c.vr):
            need = max(need, 1)
        if p.cls == "trans" and c.cls in ("valu", "permlane", "dot") and (p.vw & c.vr):
            need = max(need, 1)
        if p.cls == "trans" and c.cls in ("ds", "vmem") and (p.vw & c.vr):
            need = max(need, 1)
        if p.cls == "dot":
            if c.cls == "dot" and c.mn == p.mn:
                srcs = set()
                for o in c.ops[1:]:
                    k, r = _regs(o)
                    if k == "v":
                        srcs |= r
                if p.vw & srcs:
                    need = max(need, 3)
            elif (p.vw & (c.vr | c.vw)):
                need = max(need, 3)
        if p.sw:
            if c.cls == "vmem" and (p.sw & c.sr):
                need = max(need, 5)
            if c.cls in valu_like + ("mfma",) and (p.sw & c.sr):
                need = max(need, 4)
            if c.cls == "salu" and (p.sw & c.sr):
                need = max(need, 4)
            if c.mn.startswith("s_cbranch_vcc") and (p.sw & {106, 107}):
                need = max(need, 5)
    if p.cls == "mfma":
        n = {4: 8, 8: 12}[p.passes]
        if c.cls == "mfma":
            if p.D & (c.A | c.B):
                need = max(need, n)
            if p.D & c.C:
                if not (p.D == c.C and p.passes == c.passes):
                    need = max(need, {4: 6, 8: 10}[p.passes])
            elif p.D & c.D:
                need = max(need, n)
        else:
            if p.D & (c.vr | c.vw):
                need = max(need, n)
            if c.cls in valu_like and (p.C & c.vw):
                need = max(need, {4: 3, 8: 7}[p.passes])
    if p.cls == "salu" and (124 in p.sw):
        if c.cls == "vmem" and getattr(c, "lds", False):
            need = max(need, 1)
    if p.cls == "vmem" and getattr(p, "widestore", False):
        if p.sdata & c.vw:
            need = max(need, 2)
    return need


class Asm:
    def __init__(self):
        self.lines = []

    def __call__(self, text):
        for l in text.strip("\n").split("\n"):
            self.lines.append(l.strip())

    def raw(self, text):
        self.lines.append("\x00" + text)

    def finish(self, window=24):
        out = []
        hist = []
        npad = 0
        for l in self.lines:
            if l.startswith("\x00"):
                out.append(l[1:])
                hist = []
                continue
            ins = Ins(l)
            if ins.label or not ins.mn or ins.mn.startswith("."):
                out.append(l)
                continue
            dist = 0
            pad = 0
            for p in reversed(hist[-window:]):
                r = required(p, ins)
                if r > dist:
                    pad = max(pad, r - dist)
                dist += p.states()
                if dist > 20:
                    break
            while pad > 0:
                k = min(pad, 16)
                nop = Ins("s_nop %d" % (k - 1))
                out.append("    s_nop %d" % (k - 1))
                hist.append(nop)
                pad -= k
                npad += 1
            out.append("    " + l)
            hist.append(ins)
        self.npad = npad
        return "\n".join(out) + "\n"


class VmQ:
    def __init__(self, asm):
        self.asm = asm
        self.q = []

    def copy(self):
        v = VmQ(self.asm)
        v.q = list(self.q)
        return v

    def issue(self, tag):
        self.q.append(tag)

    def need(self, tags):
        idx = -1
        for i, t in enumerate(self.q):
            if t in tags:
                idx = i
        if idx < 0:
            return None
        n = len(self.q) - 1 - idx
        self.q = self.q[idx + 1:]
        assert n <= 63, n
        return n

    def wait(self, tags, lgkm=None):
        n = self.need(tags)
        parts = []
        if n is not None:
            parts.append("vmcnt(%d)" % n)
        if lgkm is not None:
            parts.append("lgkmcnt(%d)" % lgkm)
        if parts:
            self.asm("s_waitcnt " + " ".join(parts))


def merge(main, other, ratio=None):
    out = []
    n, m = len(main), len(other)
    j = 0
    for i, x in enumerate(main):
        out.append(x)
        tgt = (m * (i + 1) + n - 1) // n if ratio is None else min(m, (i + 1) * ratio)
        while j < tgt:
            out.append(other[j])
            j += 1
    while j < m:
        out.append(other[j])
        j += 1
    return out
```

```python
import sys
sys.path.insert(0, "exp")
from asmlib import Asm, VmQ, merge

NAME = "recurrent_scan__linear_kernel_hedgehog__dense_activation_squared_relu__prompt"

WS_H = 0
WS_PQ = 8 << 20
WS_PART = 12 << 20
WS_KVF = 14 << 20
WS_SIZE = 16 << 20

LOG2E = "0x3fb8aa3b"


def srd(a, d, lo, nbytes):
    a(f"""
    s_mov_b32 s{d}, s{lo}
    s_and_b32 s{d+1}, s{lo+1}, 0xffff
    s_mov_b32 s{d+2}, {nbytes}
    s_mov_b32 s{d+3}, 0x20000
    """)


import os
PROF = os.environ.get("PROF", "") != ""
WS_PROF = 15 << 20


def stamp(a, idx, clk=False):
    if PROF:
        a(f"{'s_memtime' if clk else 's_memrealtime'} s[{70+2*idx}:{71+2*idx}]")


def stamp_flush(a, kern, n, vt=250):
    if not PROF:
        return
    a("s_waitcnt lgkmcnt(0)")
    a(f"""
    s_lshl_b32 s68, s2, 3
    s_add_u32 s68, s68, s46
    s_lshl_b32 s68, s68, 6
    s_add_u32 s68, s68, {WS_PROF + kern*131072}
    v_mov_b32 v{vt}, 0
    s_mov_b64 exec, 1
    """)
    for i in range(n):
        a(f"v_mov_b32 v{vt+1}, s{70+2*i}")
        a(f"buffer_store_dword v{vt+1}, v{vt}, s[32:35], s68 offen offset:{4*i}")
        a("s_nop 1")
    a("s_mov_b64 exec, -1")


def vr(b, n):
    return f"v[{b}:{b+n-1}]"


def softmax_units(a, units, sl2e):
    def each(f):
        for u in units:
            a(f(u))
    P = lambda u, r: f"v{u['P']+r}"
    T = lambda u, r: f"v{u['T']+r}"
    each(lambda u: f"v_max3_f32 {T(u,8)}, {P(u,0)}, {P(u,1)}, {P(u,2)}")
    each(lambda u: f"v_max3_f32 {T(u,9)}, -{P(u,0)}, -{P(u,1)}, -{P(u,2)}")
    each(lambda u: f"v_max_f32 {T(u,8)}, {T(u,8)}, {P(u,3)}")
    each(lambda u: f"v_max_f32_e64 {T(u,9)}, {T(u,9)}, -{P(u,3)}")

    def allreduce(op):
        each(lambda u: f"v_permlane32_swap_b32 {T(u,8)}, {T(u,9)}")
        each(lambda u: f"{op} {T(u,10)}, {T(u,8)}, {T(u,9)}")
        each(lambda u: f"v_mov_b32 {T(u,11)}, {T(u,10)}")
        each(lambda u: f"v_permlane16_swap_b32 {T(u,10)}, {T(u,11)}")
        each(lambda u: f"{op} {T(u,8)}, {T(u,10)}, {T(u,11)}")
        each(lambda u: f"v_mov_b32 {T(u,9)}, {T(u,8)}")
        each(lambda u: f"v_permlane32_swap_b32 {T(u,8)}, {T(u,9)}")
    allreduce("v_max_f32")
    each(lambda u: f"v_mul_f32 {T(u,8)}, {sl2e}, {T(u,8)}")
    each(lambda u: f"v_mul_f32 {T(u,9)}, {sl2e}, {T(u,9)}")
    for r in range(4):
        each(lambda u: f"v_fma_f32 {T(u,r)}, {P(u,r)}, {sl2e}, -{T(u,8)}")
        each(lambda u: f"v_fma_f32 {T(u,4+r)}, -{P(u,r)}, {sl2e}, -{T(u,9)}")
    for r in range(8):
        each(lambda u: f"v_exp_f32 {T(u,r)}, {T(u,r)}")
    each(lambda u: f"v_add_f32 {T(u,8)}, {T(u,0)}, {T(u,1)}")
    each(lambda u: f"v_add_f32 {T(u,9)}, {T(u,4)}, {T(u,5)}")
    each(lambda u: f"v_add_f32 {T(u,10)}, {T(u,2)}, {T(u,3)}")
    each(lambda u: f"v_add_f32 {T(u,11)}, {T(u,6)}, {T(u,7)}")
    each(lambda u: f"v_add_f32 {T(u,8)}, {T(u,8)}, {T(u,10)}")
    each(lambda u: f"v_add_f32 {T(u,9)}, {T(u,9)}, {T(u,11)}")
    allreduce("v_add_f32")
    each(lambda u: f"v_rcp_f32 {T(u,8)}, {T(u,8)}")
    each(lambda u: f"v_rcp_f32 {T(u,9)}, {T(u,9)}")
    for r in range(4):
        each(lambda u: f"v_mul_f32 {T(u,r)}, {T(u,r)}, {T(u,8)}")
        each(lambda u: f"v_mul_f32 {T(u,4+r)}, {T(u,4+r)}, {T(u,9)}")
    for r in range(4):
        each(lambda u: f"v_cvt_pk_bf16_f32 v{u['O']+r}, {T(u,2*r)}, {T(u,2*r+1)}")


K1_NS = 6
K1_A, K1_Q, K1_H = 0, 49152, 98304
K1_WPHI = 147456
K1_ST = 148480
K1_LDS = 150528


def gen_k1(a):
    a.raw(".globl k1_kernel\n.p2align 8\n.type k1_kernel,@function\nk1_kernel:")
    a(f"""
    s_cmp_ge_u32 s2, 256
    s_cbranch_scc1 K1_END
    s_load_dwordx4 s[4:7], s[0:1], 0
    s_load_dwordx2 s[8:9], s[0:1], 16
    s_load_dwordx4 s[12:15], s[0:1], 40
    s_load_dwordx2 s[16:17], s[0:1], 88
    """)
    stamp(a, 0)
    stamp(a, 14, True)
    a(f"""
    v_lshrrev_b32 v4, 6, v0
    v_and_b32 v1, 63, v0
    v_and_b32 v2, 15, v0
    v_bfe_u32 v3, v0, 4, 2
    v_readfirstlane_b32 s46, v4
    s_and_b32 s50, s2, 7
    s_lshr_b32 s51, s2, 3
    s_and_b32 s52, s50, 1
    s_lshl_b32 s52, s52, 3
    s_and_b32 s53, s51, 7
    s_add_u32 s44, s52, s53          ; rb
    s_lshr_b32 s52, s50, 1
    s_lshl_b32 s52, s52, 2
    s_lshr_b32 s53, s51, 3
    s_add_u32 s45, s52, s53          ; cb
    s_and_b32 s49, s45, 1            ; par
    s_and_b32 s47, s46, 3            ; rg
    s_lshr_b32 s48, s46, 2           ; cg
    s_lshl_b32 s54, s46, 10          ; w*1024
    s_mov_b32 s55, {LOG2E}
    """)
    a(f"""
    v_lshlrev_b32 v4, 2, v0
    v_add_u32 v4, {K1_ST}, v4
    v_mov_b32 v5, 0
    ds_write_b32 v4, v5
    v_mov_b32 v21, 0x3f803f80
    """)
    a(f"""
    s_lshl_b32 s50, s44, 7
    s_lshl_b32 s51, s46, 4
    s_add_u32 s50, s50, s51
    v_lshrrev_b32 v4, 2, v1
    v_add_u32 v4, s50, v4
    v_lshlrev_b32 v4, 10, v4
    v_sub_u32 v5, 0, v3
    v_and_b32 v5, 3, v5
    v_and_b32 v6, 3, v1
    v_xor_b32 v5, v5, v6
    v_lshl_add_u32 v10, v5, 4, v4
    """)
    a(f"""
    s_lshr_b32 s50, s46, 1
    s_and_b32 s50, s50, 1
    s_lshl_b32 s50, s50, 2
    v_or_b32 v4, s50, v3
    v_lshlrev_b32 v4, 1, v4
    v_xor_b32 v4, v4, v2             ; u
    s_lshl_b32 s51, s46, 2
    v_add_u32 v5, s51, v3            ; row
    v_lshrrev_b32 v6, 2, v4
    v_min_u32 v6, 2, v6              ; seg
    v_and_b32 v7, 3, v4
    v_lshlrev_b32 v6, 10, v6
    v_lshl_add_u32 v6, v7, 4, v6
    s_movk_i32 s50, 3072
    v_mul_lo_u32 v7, v5, s50
    s_lshl_b32 s51, s45, 6
    v_add3_u32 v11, v6, v7, s51      ; vOffQ
    v_min_u32 v6, 13, v4
    s_lshl_b32 s50, s49, 1
    v_add_u32 v6, s50, v6
    v_subrev_u32 v7, 14, v6
    v_min_u32 v6, v6, v7
    s_movk_i32 s50, 3584
    v_mul_lo_u32 v7, v5, s50
    s_mul_i32 s51, s45, 224
    v_lshl_add_u32 v6, v6, 4, v7
    v_add_u32 v12, s51, v6           ; vOffH
    """)
    a(f"""
    v_lshrrev_b32 v4, 2, v2          ; i>>2
    v_sub_u32 v5, 0, v4
    v_and_b32 v5, 3, v5
    v_xor_b32 v5, v5, v3
    v_lshlrev_b32 v5, 4, v5
    s_lshl_b32 s50, s47, 5
    v_add_u32 v6, s50, v2
    v_lshl_add_u32 v13, v6, 6, v5    ; vA
    v_and_b32 v5, 1, v3
    v_lshl_or_b32 v5, v5, 2, v4      ; swzr>>1
    v_lshlrev_b32 v5, 5, v5
    v_lshl_add_u32 v6, v3, 3, v4     ; row = 8g + (i>>2)
    v_lshl_add_u32 v5, v6, 8, v5
    v_and_b32 v6, 3, v2
    v_lshl_add_u32 v5, v6, 3, v5     ; + (i&3)*8
    s_mul_i32 s50, s48, {K1_H - K1_Q}
    s_add_u32 s50, s50, {K1_Q}
    v_add_u32 v14, s50, v5           ; vB[0]
    """)
    for t in range(1, 7):
        a(f"v_xor_b32 v{14+t}, {t << 5}, v14")
    a(f"""
    s_lshl_b32 s50, s47, 5
    s_lshl_b32 s51, s48, 4
    s_add_u32 s51, s51, s50
    v_add_u32 v4, s51, v2
    v_lshlrev_b32 v4, 2, v4
    v_add_u32 v33, {K1_ST}, v4
    v_add_u32 v4, s50, v2
    v_lshlrev_b32 v4, 2, v4
    v_add_u32 v35, {K1_ST}, v4
    s_lshl_b32 s50, s48, 9
    s_add_u32 s50, s50, {K1_ST + 1024}
    v_lshlrev_b32 v4, 2, v2
    v_add_u32 v34, s50, v4
    v_lshlrev_b32 v4, 4, v3
    v_add_u32 v36, s50, v4
    v_lshlrev_b32 v37, 4, v1         ; lane*16
    """)
    for r in range(22, 33):
        a(f"v_mov_b32 v{r}, 0")
    for r in range(136, 192):
        a(f"v_mov_b32 v{r}, 0")
    a("s_waitcnt lgkmcnt(0)")
    srd(a, 20, 4, 2048 * 1024)
    srd(a, 24, 6, 512 * 3072)
    srd(a, 28, 12, 512 * 3584)
    srd(a, 32, 16, WS_SIZE)
    srd(a, 36, 14, 3584)
    srd(a, 40, 8, 16384)
    q = VmQ(a)

    def dma(s):
        slot = s % K1_NS
        return [
            f"s_add_u32 m0, s54, {K1_A + slot*8192}\ns_movk_i32 s56, {s*64}\nbuffer_load_dwordx4 v10, s[20:23], s56 offen lds",
            f"s_add_u32 m0, s54, {K1_Q + slot*8192}\ns_mov_b32 s57, {s*98304}\nbuffer_load_dwordx4 v11, s[24:27], s57 offen lds",
            f"s_add_u32 m0, s54, {K1_H + slot*8192}\ns_mov_b32 s58, {s*114688}\nbuffer_load_dwordx4 v12, s[28:31], s58 offen lds",
        ]

    a(f"""
    s_mov_b32 m0, {K1_WPHI}
    s_lshl_b32 s50, s45, 10
    buffer_load_dwordx4 v37, s[40:43], s50 offen lds
    """)
    q.issue("wphi")
    for s in range(K1_NS):
        for d in dma(s):
            a(d)
            q.issue(("st", s))
    stamp(a, 1)
    a("s_cmp_eq_u32 s48, 1")
    a("s_cbranch_scc1 K1_HPATH")

    FS = [64, 100]
    ACC = 136

    def path(nt, cg, q):
        if cg == 1:
            a(f"""
            s_mul_i32 s50, s45, 224
            s_lshl_b32 s51, s49, 5
            s_add_u32 s51, s51, s50
            v_lshlrev_b32 v4, 3, v3
            v_add_u32 v5, s51, v4
            s_mul_i32 s51, s49, 192
            s_sub_u32 s51, 192, s51
            s_add_u32 s51, s51, s50
            v_add_u32 v6, s51, v4
            """)
            for t in range(6):
                a(f"buffer_load_dwordx2 {vr(40+2*t,2)}, v5, s[36:39], 0 offen offset:{32*t}")
                q.issue("bias")
            a(f"buffer_load_dwordx2 {vr(52,2)}, v6, s[36:39], 0 offen")
            q.issue("bias")

        def reads(s):
            slot = s % K1_NS
            f = FS[s & 1]
            r = []
            for mi in range(2):
                r.append(f"ds_read_b128 {vr(f+4*mi,4)}, v13 offset:{slot*8192 + mi*1024}")
            for t in range(nt):
                r.append(f"ds_read_b64_tr_b16 {vr(f+8+4*t,2)}, v{14+t} offset:{slot*8192}")
                r.append(f"ds_read_b64_tr_b16 {vr(f+8+4*t+2,2)}, v{14+t} offset:{slot*8192+1024}")
            return r

        q.wait([("st", 0)], lgkm=0)
        stamp(a, 2)
        a("s_barrier")
        for r in reads(0):
            a(r)
        for s in range(16):
            if s in (1, 4, 8, 12):
                stamp(a, 3 + (1, 4, 8, 12).index(s))
            f = FS[s & 1]
            q.wait([("st", s + 1)] if s + 1 < 16 else [], lgkm=0)
            a("s_barrier")
            other = []
            if s + K1_NS < 16:
                for d in dma(s + K1_NS):
                    other.append(d)
                    q.issue(("st", s + K1_NS))
            if s + 1 < 16:
                other += reads(s + 1)
            st = []
            af = f + 4 * cg
            for j in range(4):
                st.append(f"v_dot2c_f32_bf16 v{22 + (j & 1)}, v{af+j}, v21")
                st.append(f"v_dot2c_f32_bf16 v{24 + (j & 1)}, v{af+j}, v{af+j}")
            mf = []
            for t in range(nt):
                for mi in range(2):
                    c = ACC + 8 * t + 4 * mi
                    mf.append(f"v_mfma_f32_16x16x32_bf16 {vr(c,4)}, {vr(f+8+4*t,4)}, {vr(f+4*mi,4)}, {vr(c,4)}")
            for x in merge(mf, merge(other, st) if other else st):
                a(x)
            lab = f"K1_CS_{cg}_{s}"
            a(f"s_cmp_lg_u32 s47, {s & 3}")
            a(f"s_cbranch_scc1 {lab}")
            for j in range(4):
                for t in range(nt):
                    a(f"v_dot2c_f32_bf16 v{26+t}, v{f+8+4*t+j}, v21")
            a("s_nop 3")
            a(f"{lab}:")
        stamp(a, 7)
        a("""
        s_nop 3
        v_add_f32 v22, v22, v23
        v_add_f32 v24, v24, v25
        ds_add_f32 v33, v22
        ds_add_f32 v33, v24 offset:512
        """)
        for t in range(nt):
            a(f"ds_add_f32 v34, v{26+t} offset:{64*t}")
        a("s_waitcnt lgkmcnt(0)")
        a("s_barrier")
        stamp(a, 8)
        CS = 64
        a("""
        ds_read_b32 v4, v35
        ds_read_b32 v5, v35 offset:64
        ds_read_b32 v6, v35 offset:512
        ds_read_b32 v7, v35 offset:576
        """)
        for t in range(nt):
            a(f"ds_read_b128 {vr(CS+4*t,4)}, v36 offset:{64*t}")
        if cg == 0:
            a(f"""
            v_lshl_add_u32 v8, v3, 2, 0
            v_lshrrev_b32 v9, 2, v2
            v_add_u32 v8, v8, v9
            v_lshlrev_b32 v8, 5, v8
            v_and_b32 v9, 3, v2
            v_lshl_add_u32 v8, v9, 3, v8
            v_add_u32 v8, {K1_WPHI}, v8
            ds_read_b64_tr_b16 v[56:57], v8
            ds_read_b64_tr_b16 v[58:59], v8 offset:512
            """)
        a("s_waitcnt lgkmcnt(0)")
        a("""
        v_mul_f32 v4, 0x3b000000, v4
        v_mul_f32 v5, 0x3b000000, v5
        v_mul_f32 v6, 0x3b000000, v6
        v_mul_f32 v7, 0x3b000000, v7
        v_fma_f32 v6, -v4, v4, v6
        v_fma_f32 v7, -v5, v5, v7
        v_max_f32 v6, 0, v6
        v_max_f32 v7, 0, v7
        v_add_f32 v6, 0x3727c5ac, v6
        v_add_f32 v7, 0x3727c5ac, v7
        v_rsq_f32 v60, v6
        v_rsq_f32 v61, v7
        v_mul_f32 v62, v4, v60
        v_mul_f32 v63, v5, v61
        v_sub_f32 v62, 0, v62
        v_sub_f32 v63, 0, v63
        """)
        a("""
        s_lshl_b32 s59, s44, 3
        s_lshl_b32 s50, s47, 1
        s_add_u32 s59, s59, s50
        """)
        PKI, VI = 0, 16384
        if cg == 1:
            q.wait(["bias"])
            BU = 100
            for t in range(7):
                a(f"""
                v_lshlrev_b32 v{BU+4*t}, 16, v{40+2*t}
                v_and_b32 v{BU+4*t+1}, 0xffff0000, v{40+2*t}
                v_lshlrev_b32 v{BU+4*t+2}, 16, v{41+2*t}
                v_and_b32 v{BU+4*t+3}, 0xffff0000, v{41+2*t}
                """)
            a(f"""
            s_lshr_b32 s50, s45, 1
            s_mul_i32 s50, s50, 7
            s_lshl_b32 s51, s49, 2
            s_add_u32 s51, s51, s50
            s_mul_i32 s52, s59, 56
            s_add_u32 s51, s51, s52
            s_lshl_b32 s60, s51, 10
            s_add_u32 s61, s60, {56*1024}    ; mi=1
            s_add_u32 s50, s50, 3
            s_add_u32 s50, s50, s52
            s_lshl_b32 s50, s50, 10
            s_lshl_b32 s51, s49, 3
            s_add_u32 s62, s50, s51
            s_add_u32 s63, s62, {56*1024}
            """)
            OUT = 192
            for mi in range(2):
                for t in range(7):
                    c = ACC + 8 * t + 4 * mi
                    tmp = 128 + 4 * (t & 1)
                    for r in range(4):
                        a(f"v_fma_f32 v{tmp+r}, v{62+mi}, v{CS+4*t+r}, v{BU+4*t+r}")
                    for r in range(4):
                        a(f"v_fma_f32 v{c+r}, v{c+r}, v{60+mi}, v{tmp+r}")
                    for r in range(4):
                        a(f"v_max_f32 v{c+r}, 0, v{c+r}")
                    for r in range(4):
                        a(f"v_mul_f32 v{c+r}, v{c+r}, v{c+r}")
                    o = OUT + 16 * mi + 2 * t
                    a(f"v_cvt_pk_bf16_f32 v{o}, v{c}, v{c+1}")
                    a(f"v_cvt_pk_bf16_f32 v{o+1}, v{c+2}, v{c+3}")
                    if t in (1, 3, 5):
                        a(f"buffer_store_dwordx4 {vr(o-2,4)}, v37, s[32:35], s{60+mi} offen offset:{(t>>1)*1024}")
                    if t == 6:
                        a(f"buffer_store_dwordx2 {vr(o,2)}, v37, s[32:35], s{62+mi} offen")
            a(f"""
            s_lshr_b32 s50, s47, 1
            s_and_b32 s51, s47, 1
            v_lshrrev_b32 v4, 2, v2
            v_lshl_add_u32 v4, v3, 3, v4     ; row = 8g + (i>>2)
            v_and_b32 v5, 3, v2
            v_lshlrev_b32 v5, 3, v5
            v_lshl_add_u32 v6, v4, 6, v5
            s_lshl_b32 s52, s50, 13
            s_lshl_b32 s53, s51, 5
            s_add_u32 s52, s52, s53
            s_add_u32 s52, s52, {PKI}
            v_add_u32 v6, s52, v6
            v_lshl_add_u32 v7, v4, 5, v5
            s_lshl_b32 s52, s50, 12
            s_add_u32 s52, s52, {VI}
            v_add_u32 v7, s52, v7
            v_mov_b32 v64, v21
            v_mov_b32 v65, v21
            v_mov_b32 v66, v21
            v_mov_b32 v67, v21
            s_lshl_b32 s52, s44, 17
            s_lshl_b32 s53, s45, 1
            s_add_u32 s53, s53, s50          ; head
            s_lshl_b32 s53, s53, 11
            s_add_u32 s52, s52, s53
            s_lshl_b32 s53, s51, 4
            s_add_u32 s52, s52, s53
            s_add_u32 s52, s52, {WS_PART}
            v_lshlrev_b32 v8, 5, v1
            """)
            stamp(a, 9)
            a("s_barrier")
            stamp(a, 10)
            for kk in range(4):
                fa, fb = 68 + 8 * kk, 72 + 8 * kk
                a(f"""
                ds_read_b64_tr_b16 {vr(fa,2)}, v6 offset:{kk*2048}
                ds_read_b64_tr_b16 {vr(fa+2,2)}, v6 offset:{kk*2048+256}
                ds_read_b64_tr_b16 {vr(fb,2)}, v7 offset:{kk*1024}
                ds_read_b64_tr_b16 {vr(fb+2,2)}, v7 offset:{kk*1024+128}
                """)
            a("s_waitcnt lgkmcnt(0)")
            for kk in range(4):
                fa, fb = 68 + 8 * kk, 72 + 8 * kk
                c0 = "0" if kk == 0 else "v[100:103]"
                c1 = "0" if kk == 0 else "v[104:107]"
                a(f"v_mfma_f32_16x16x32_bf16 v[100:103], {vr(fa,4)}, {vr(fb,4)}, {c0}")
                a(f"v_mfma_f32_16x16x32_bf16 v[104:107], {vr(fa,4)}, v[64:67], {c1}")
            a(f"""
            buffer_store_dwordx4 v[100:103], v8, s[32:35], s52 offen
            s_add_u32 s52, s52, 65536
            buffer_store_dwordx4 v[104:107], v8, s[32:35], s52 offen
            """)
            stamp(a, 11)
            if PROF:
                a("s_waitcnt vmcnt(0)")
            stamp(a, 12)
            stamp(a, 15, True)
            stamp_flush(a, 0, 16)
            a("s_branch K1_END")
        else:
            PK2 = 192
            def fold(t, mi):
                c = ACC + 8 * t + 4 * mi
                for r in range(4):
                    a(f"v_mul_f32 v{c+r}, v{c+r}, v{60+mi}")
                for r in range(4):
                    a(f"v_fma_f32 v{c+r}, v{62+mi}, v{CS+4*t+r}, v{c+r}")
                o = PK2 + (t * 2 + mi) * 2
                a(f"v_cvt_pk_bf16_f32 v{o}, v{c}, v{c+1}")
                a(f"v_cvt_pk_bf16_f32 v{o+1}, v{c+2}, v{c+3}")
            a(f"""
            s_lshl_b32 s50, s47, 5
            v_add_u32 v4, s50, v2
            v_lshlrev_b32 v5, 3, v3
            v_lshl_add_u32 v6, v4, 6, v5     ; PK: m*64 + 8g
            v_lshl_add_u32 v7, v4, 5, v5     ; V: m*32 + 8g
            """)
            for t in (2, 3, 4, 5):
                for mi in range(2):
                    fold(t, mi)
            for hh in range(2):
                for mi in range(2):
                    o = PK2 + ((4 + hh) * 2 + mi) * 2
                    a(f"ds_write_b64 v7, {vr(o,2)} offset:{VI + hh*4096 + mi*512}")

            def featmap(t0):
                units = []
                for hh in range(2):
                    for mi in range(2):
                        k = hh * 2 + mi
                        u = dict(P=ACC + 8 * (t0 + hh) + 4 * mi, T=88 + 12 * k, O=216 + 4 * k, hh=hh, mi=mi)
                        o = PK2 + ((t0 + hh) * 2 + mi) * 2
                        a(f"v_mfma_f32_16x16x16_bf16 {vr(u['P'],4)}, {vr(56+2*hh,2)}, {vr(o,2)}, 0")
                        units.append(u)
                softmax_units(a, units, "s55")
                return units
            for u in featmap(2):
                base = PKI + u['hh'] * 8192 + u['mi'] * 1024
                a(f"ds_write_b64 v6, {vr(u['O'],2)} offset:{base}")
                a(f"ds_write_b64 v6, {vr(u['O']+2,2)} offset:{base+32}")
            a("s_waitcnt lgkmcnt(0)")
            stamp(a, 9)
            a("s_barrier")
            stamp(a, 10)
            for t in (0, 1):
                for mi in range(2):
                    fold(t, mi)
            a(f"""
            s_lshl_b32 s50, s59, 5
            s_lshl_b32 s51, s45, 1
            s_add_u32 s50, s50, s51
            s_lshl_b32 s50, s50, 10
            s_add_u32 s60, s50, {WS_PQ}
            s_add_u32 s61, s60, 32768
            """)
            for u in featmap(0):
                a(f"buffer_store_dwordx4 {vr(u['O'],4)}, v37, s[32:35], s{60+u['mi']} offen offset:{u['hh']*1024}")
            stamp(a, 11)
            if PROF:
                a("s_waitcnt vmcnt(0)")
            stamp(a, 12)
            stamp(a, 15, True)
            stamp_flush(a, 0, 16)
            a("s_branch K1_END")

    q2 = q.copy()
    path(6, 0, q)
    a("K1_HPATH:")
    a("s_nop 4")
    path(7, 1, q2)
    a("K1_END:")
    a("s_endpgm")


K2_NS = 11
K2_KV = K2_NS * 8192
K2_LDS = K2_KV + 65536
K2_NA = 16
K2_NST = 36
P_POLL, P_CHECK, P_KVW = 14, 20, 25


def gen_k2(a):
    a.raw(".globl k2_kernel\n.p2align 8\n.type k2_kernel,@function\nk2_kernel:")
    a(f"""
    s_cmp_ge_u32 s2, 256
    s_cbranch_scc1 K2_END
    s_load_dwordx2 s[4:5], s[0:1], 0
    s_load_dwordx2 s[6:7], s[0:1], 24
    s_load_dwordx4 s[8:11], s[0:1], 56
    s_load_dwordx4 s[12:15], s[0:1], 72
    s_load_dwordx2 s[16:17], s[0:1], 88
    """)
    stamp(a, 0)
    stamp(a, 14, True)
    a(f"""
    v_lshrrev_b32 v4, 6, v0
    v_and_b32 v1, 63, v0
    v_and_b32 v2, 15, v0
    v_bfe_u32 v3, v0, 4, 2
    v_readfirstlane_b32 s46, v4
    s_and_b32 s50, s2, 7
    s_lshr_b32 s51, s2, 3
    s_lshl_b32 s52, s50, 2
    s_and_b32 s53, s51, 3
    s_add_u32 s60, s52, s53          ; mb
    s_lshr_b32 s61, s51, 2           ; nb
    s_and_b32 s47, s46, 3            ; mt_l
    s_lshr_b32 s48, s46, 2           ; kh
    s_lshl_b32 s54, s46, 10          ; w*1024
    s_mov_b32 s55, {LOG2E}
    s_lshl_b32 s62, s60, 2
    s_add_u32 s62, s62, s47          ; mt
    """)
    a(f"""
    v_lshrrev_b32 v4, 3, v1
    s_lshl_b32 s50, s46, 3
    v_add_u32 v4, s50, v4
    v_and_b32 v5, 7, v1
    v_lshlrev_b32 v6, 1, v3
    v_xor_b32 v5, v5, v6
    v_lshlrev_b32 v5, 4, v5
    v_lshl_add_u32 v4, v4, 10, v5
    s_lshl_b32 s50, s61, 7
    v_add_u32 v10, s50, v4           ; vOffB
    v_lshlrev_b32 v17, 4, v1         ; lane*16
    s_mul_i32 s50, s62, 56
    s_add_u32 s50, s50, s48
    s_lshl_b32 s50, s50, 10
    v_add_u32 v11, s50, v17          ; vOffA (h)
    s_lshl_b32 s50, s62, 5
    s_lshl_b32 s51, s48, 1
    s_add_u32 s50, s50, s51
    s_lshl_b32 s50, s50, 10
    s_add_u32 s50, s50, {WS_PQ}
    v_add_u32 v12, s50, v17          ; vOffP
    """)
    a(f"""
    v_lshrrev_b32 v4, 2, v2
    v_lshl_add_u32 v4, v3, 2, v4
    s_lshl_b32 s50, s48, 5
    v_add_u32 v4, s50, v4
    v_lshrrev_b32 v5, 3, v2
    v_lshl_add_u32 v5, v3, 1, v5
    v_and_b32 v5, 3, v5
    v_lshlrev_b32 v5, 5, v5
    v_lshl_add_u32 v4, v4, 7, v5
    v_and_b32 v5, 3, v2
    v_lshl_add_u32 v13, v5, 3, v4
    v_xor_b32 v14, 32, v13
    v_xor_b32 v15, 64, v13
    v_xor_b32 v16, 96, v13
    v_add_u32 v236, 0x10000, v13
    v_add_u32 v237, 0x10000, v14
    v_add_u32 v238, 0x10000, v15
    v_add_u32 v239, 0x10000, v16
    """)
    a(f"""
    s_lshr_b32 s50, s2, 2            ; rec
    s_and_b32 s51, s2, 3
    s_lshl_b32 s52, s50, 11
    s_lshl_b32 s53, s51, 9
    s_add_u32 s52, s52, s53
    s_lshl_b32 s53, s46, 6
    s_add_u32 s52, s52, s53
    s_add_u32 s52, s52, {WS_PART}
    v_lshrrev_b32 v4, 2, v1
    v_lshlrev_b32 v4, 17, v4
    v_and_b32 v5, 3, v1
    v_lshl_add_u32 v4, v5, 4, v4
    v_add_u32 v36, s52, v4
    s_lshl_b32 s52, s50, 10
    s_lshl_b32 s53, s51, 8
    s_add_u32 s52, s52, s53
    s_lshl_b32 s53, s46, 5
    s_add_u32 s52, s52, s53
    s_add_u32 s52, s52, {WS_KVF}
    v_lshlrev_b32 v5, 3, v5
    v_add_u32 v37, s52, v5
    s_lshl_b32 s50, s46, 13
    s_add_u32 s50, s50, {WS_KVF}
    v_add_u32 v38, s50, v17
    s_lshl_b32 s50, s46, 13
    s_add_u32 s50, s50, {K2_KV}
    v_add_u32 v39, s50, v17
    s_lshl_b32 s50, s48, 11
    s_add_u32 s50, s50, {K2_KV}
    v_add_u32 v18, s50, v17
    v_lshlrev_b32 v19, 2, v1
    """)
    a(f"""
    v_lshrrev_b32 v4, 3, v0
    v_and_b32 v5, 7, v0
    s_lshl_b32 s50, s60, 6
    v_add_u32 v6, s50, v4
    v_lshlrev_b32 v6, 10, v6
    v_lshlrev_b32 v7, 4, v5
    s_lshl_b32 s50, s61, 7
    v_add_u32 v7, s50, v7
    v_add_u32 v232, v6, v7
    v_mov_b32 v233, v7               ; b2 offset
    s_movk_i32 s50, 272
    v_mul_lo_u32 v6, v4, s50
    v_lshl_add_u32 v234, v5, 5, v6
    s_lshl_b32 s51, s47, 4
    v_add_u32 v6, s51, v2
    v_mul_lo_u32 v6, v6, s50
    v_lshl_add_u32 v6, v3, 4, v6
    s_mul_i32 s51, s48, {2*17408}
    v_add_u32 v235, s51, v6
    """)
    for r in range(136, 168):
        a(f"v_mov_b32 v{r}, 0")
    a("s_waitcnt lgkmcnt(0)")
    srd(a, 20, 4, 2048 * 1024)
    srd(a, 24, 6, 512 * 1024)
    srd(a, 28, 8, 1792 * 1024)
    srd(a, 32, 16, WS_SIZE)
    srd(a, 36, 10, 1024)
    srd(a, 40, 12, 2048 * 1024)
    srd(a, 64, 14, 256)
    q = VmQ(a)
    AR = 40
    BF = [104, 120]
    KZ = [168, 184]

    def dma(s):
        slot = s % K2_NS
        sr = "s[28:31]" if s < 28 else "s[24:27]"
        so = (s if s < 28 else s - 28) * 65536
        return f"s_add_u32 m0, s54, {slot*8192}\ns_mov_b32 s56, {so}\nbuffer_load_dwordx4 v10, {sr}, s56 offen lds"

    frags = []
    for s in range(28):
        frags.append((s, 0))
    for s in range(28, 36):
        frags.append((s, 0))
        frags.append((s, 1))
    first_frag = {}
    for k, (s, e) in enumerate(frags):
        first_frag.setdefault(s, k)

    def aload(k):
        s, e = frags[k]
        r = AR + 4 * (k % K2_NA)
        if s < 28:
            return f"s_mov_b32 s57, {s*2048}\nbuffer_load_dwordx4 {vr(r,4)}, v11, s[32:35], s57 offen"
        return f"s_mov_b32 s57, {(s-28)*4096 + e*1024}\nbuffer_load_dwordx4 {vr(r,4)}, v12, s[32:35], s57 offen"

    a("buffer_load_dwordx4 v[20:23], v36, s[32:35], 0 offen")
    q.issue("part")
    nextA = 0
    for s in range(K2_NS):
        a(dma(s)); q.issue(("B", s))
        a(aload(nextA)); q.issue(("A", nextA)); nextA += 1
    while nextA < K2_NA:
        a(aload(nextA)); q.issue(("A", nextA)); nextA += 1
    stamp(a, 1)
    q.wait(["part"])
    stamp(a, 2)
    for r in range(4):
        a(f"v_add_f32_dpp v{24+r}, v{20+r}, v{20+r} row_ror:8 row_mask:0xf bank_mask:0xf")
    for r in range(4):
        a(f"v_add_f32_dpp v{20+r}, v{24+r}, v{24+r} row_ror:4 row_mask:0xf bank_mask:0xf")
    for sw in ("v_permlane16_swap_b32", "v_permlane32_swap_b32"):
        for r in range(4):
            a(f"v_mov_b32 v{24+r}, v{20+r}")
        for r in range(4):
            a(f"{sw} v{20+r}, v{24+r}")
        for r in range(4):
            a(f"v_add_f32 v{20+r}, v{20+r}, v{24+r}")
    a("""
    v_cvt_pk_bf16_f32 v24, v20, v21
    v_cvt_pk_bf16_f32 v25, v22, v23
    s_mov_b64 exec, 15
    buffer_store_dwordx2 v[24:25], v37, s[32:35], 0 offen sc0 sc1
    s_mov_b64 exec, -1
    """)
    q.issue("kvst")

    def reads(s):
        slot = s % K2_NS
        f = BF[s & 1]
        r = []
        vb, off = (13, slot * 8192) if slot < 8 else (236, (slot - 8) * 8192)
        for t in range(4):
            r.append(f"ds_read_b64_tr_b16 {vr(f+4*t,2)}, v{vb+t} offset:{off}")
            r.append(f"ds_read_b64_tr_b16 {vr(f+4*t+2,2)}, v{vb+t} offset:{off+2048}")
        if s >= 28:
            kz = KZ[s & 1]
            hb = (s - 28) * 4096
            r.append(f"ds_read_b128 {vr(kz,4)}, v18 offset:{hb}")
            r.append(f"ds_read_b128 {vr(kz+4,4)}, v18 offset:{32768+hb}")
            r.append(f"ds_read_b128 {vr(kz+8,4)}, v18 offset:{hb+1024}")
            r.append(f"ds_read_b128 {vr(kz+12,4)}, v18 offset:{32768+hb+1024}")
        return r

    q.wait([("B", 0)])
    a("s_barrier")
    for r in reads(0):
        a(r)
    for s in range(K2_NST):
        if s in (0, 4, 10, 20, 21, 25, 28, 32):
            stamp(a, 3 + (0, 4, 10, 20, 21, 25, 28, 32).index(s))
        f = BF[s & 1]
        k0 = first_frag[s]
        nfr = 1 if s < 28 else 2
        tags = [("A", k0 + nfr - 1)]
        if s + 1 < K2_NST:
            tags.append(("B", s + 1))
        if s == 2:
            tags.append("kvst")
        if s == P_CHECK:
            tags.append("poll")
        if s == P_KVW:
            tags.append("kvf")
        q.wait(tags, lgkm=0)
        if s == P_CHECK:
            a(f"""
            s_mov_b32 s59, 0
            K2_POLLCHK:
            v_cmp_ne_u32 vcc, 4, v26
            s_cbranch_vccz K2_POLLOK
            s_add_u32 s59, s59, 1
            s_cmp_gt_u32 s59, 100000
            s_cbranch_scc1 K2_POLLOK
            s_sleep 8
            buffer_load_dword v26, v19, s[64:67], 0 offen sc1
            s_waitcnt vmcnt(0)
            s_branch K2_POLLCHK
            K2_POLLOK:
            """)
            for r in range(8):
                a(f"buffer_load_dwordx4 {vr(168+4*r,4)}, v38, s[32:35], 0 offen offset:{(r&3)*1024} sc1" if r < 4 else
                  f"buffer_load_dwordx4 {vr(168+4*r,4)}, v38, s[32:35], s58 offen offset:{(r&3)*1024} sc1")
                q.issue("kvf")
        if s == P_KVW:
            for r in range(8):
                a(f"ds_write_b128 v39, {vr(168+4*r,4)} offset:{r*1024}")
            a("s_waitcnt lgkmcnt(0)")
        a("s_barrier")
        other = []
        if s == 2:
            a(f"""
            s_and_b32 s50, s2, 63
            s_lshl_b32 s50, s50, 2
            v_mov_b32 v27, 1
            v_mov_b32 v26, 0
            s_mov_b64 exec, 1
            s_cmp_eq_u32 s46, 0
            s_cbranch_scc0 K2_NOSIG
            buffer_atomic_add v27, v26, s[64:67], s50 offen sc1
            s_branch K2_SIGD
            K2_NOSIG:
            buffer_load_dword v27, v26, s[64:67], s50 offen
            K2_SIGD:
            s_mov_b64 exec, -1
            s_movk_i32 s58, 4096
            """)
            q.issue("sig")
        if s == P_POLL:
            other.append("buffer_load_dword v26, v19, s[64:67], 0 offen sc1")
            q.issue("poll")
        if s == 16:
            other.append("buffer_load_dwordx4 v[28:31], v232, s[20:23], 0 offen")
            q.issue("x")
            other.append("buffer_load_dwordx4 v[32:35], v233, s[36:39], 0 offen")
            q.issue("b2")
        if s + K2_NS < K2_NST:
            other.append(dma(s + K2_NS)); q.issue(("B", s + K2_NS))
        if s + 1 < K2_NST:
            other += reads(s + 1)
        while nextA < len(frags) and nextA - K2_NA < k0:
            other.append(aload(nextA)); q.issue(("A", nextA)); nextA += 1
        if s < 28:
            ar = AR + 4 * (k0 % K2_NA)
            mf = [f"v_mfma_f32_16x16x32_bf16 {vr(136+4*t,4)}, {vr(f+4*t,4)}, {vr(ar,4)}, {vr(136+4*t,4)}" for t in range(4)]
            for x in merge(mf, other):
                a(x)
        else:
            kz = KZ[s & 1]
            p0 = AR + 4 * (k0 % K2_NA)
            p1 = AR + 4 * ((k0 + 1) % K2_NA)
            mf = [
                f"v_mfma_f32_16x16x32_bf16 v[200:203], {vr(kz,4)}, {vr(p0,4)}, 0",
                f"v_mfma_f32_16x16x32_bf16 v[204:207], {vr(kz+4,4)}, {vr(p0,4)}, 0",
                f"v_mfma_f32_16x16x32_bf16 v[208:211], {vr(kz+8,4)}, {vr(p1,4)}, 0",
                f"v_mfma_f32_16x16x32_bf16 v[212:215], {vr(kz+12,4)}, {vr(p1,4)}, 0",
            ]
            for x in merge(mf, other):
                a(x)
            a("""
            v_add_f32 v220, 0x358637bd, v204
            v_add_f32 v221, 0x358637bd, v212
            v_rcp_f32 v220, v220
            v_rcp_f32 v221, v221
            """)
            for r in range(4):
                a(f"v_mul_f32 v{200+r}, v{200+r}, v220")
            for r in range(4):
                a(f"v_mul_f32 v{208+r}, v{208+r}, v221")
            a("""
            v_cvt_pk_bf16_f32 v216, v200, v201
            v_cvt_pk_bf16_f32 v217, v202, v203
            v_cvt_pk_bf16_f32 v218, v208, v209
            v_cvt_pk_bf16_f32 v219, v210, v211
            """)
            for t in range(4):
                a(f"v_mfma_f32_16x16x32_bf16 {vr(152+4*t,4)}, {vr(f+4*t,4)}, v[216:219], {vr(152+4*t,4)}")
    stamp(a, 11)
    a("s_barrier")
    for t in range(4):
        a(f"ds_write_b128 v235, {vr(136+4*t,4)} offset:{64*t}")
        a(f"ds_write_b128 v235, {vr(152+4*t,4)} offset:{17408+64*t}")
    a("s_waitcnt lgkmcnt(0)")
    a("s_barrier")
    for arr in range(4):
        a(f"ds_read_b128 {vr(40+8*arr,4)}, v234 offset:{arr*17408}")
        a(f"ds_read_b128 {vr(44+8*arr,4)}, v234 offset:{arr*17408+16}")
    q.wait(["x", "b2"], lgkm=0)
    for j in range(4):
        a(f"""
        v_lshlrev_b32 v{72+2*j}, 16, v{32+j}
        v_and_b32 v{73+2*j}, 0xffff0000, v{32+j}
        v_lshlrev_b32 v{80+2*j}, 16, v{28+j}
        v_and_b32 v{81+2*j}, 0xffff0000, v{28+j}
        """)
    for e in range(8):
        a(f"v_add3_u32 v{88+e}, 0, 0, 0") if False else None
        a(f"v_add_f32 v{40+e}, v{40+e}, v{56+e}")
    for e in range(8):
        a(f"v_add_f32 v{48+e}, v{48+e}, v{64+e}")
    for e in range(8):
        a(f"v_add_f32 v{40+e}, v{40+e}, v{72+e}")
    for e in range(8):
        a(f"v_mul_f32_e64 v{88+e}, -v{40+e}, s55")
    for e in range(8):
        a(f"v_exp_f32 v{88+e}, v{88+e}")
    for e in range(8):
        a(f"v_add_f32 v{88+e}, 1.0, v{88+e}")
    for e in range(8):
        a(f"v_rcp_f32 v{88+e}, v{88+e}")
    for e in range(8):
        a(f"v_mul_f32 v{40+e}, v{40+e}, v{88+e}")
    for e in range(8):
        a(f"v_fma_f32 v{40+e}, v{40+e}, v{48+e}, v{80+e}")
    for j in range(4):
        a(f"v_cvt_pk_bf16_f32 v{96+j}, v{40+2*j}, v{41+2*j}")
    a("buffer_store_dwordx4 v[96:99], v232, s[40:43], 0 offen")
    stamp(a, 12)
    if PROF:
        a("s_waitcnt vmcnt(0)")
    stamp(a, 13)
    stamp(a, 15, True)
    stamp_flush(a, 1, 16)
    a("K2_END:")
    a("s_endpgm")


def kd(name, nv):
    return f""".p2align 6
.amdhsa_kernel {name}
  .amdhsa_next_free_vgpr {nv}
  .amdhsa_next_free_sgpr 102
  .amdhsa_accum_offset {nv}
  .amdhsa_group_segment_fixed_size 0
  .amdhsa_kernarg_size 96
  .amdhsa_user_sgpr_count 2
  .amdhsa_user_sgpr_kernarg_segment_ptr 1
  .amdhsa_system_sgpr_workgroup_id_x 1
.end_amdhsa_kernel
"""


def main(out):
    a = Asm()
    a.raw(f"""; Two-launch implementation (generated by exp/gen.py; hand-designed assembly).
; @launch kernel=k1_kernel grid=(256,1,1) block=(512,1,1) lds={K1_LDS}
; @launch kernel=k2_kernel grid=(256,1,1) block=(512,1,1) lds={K2_LDS}
.amdgcn_target "amdgcn-amd-amdhsa--gfx950"
.text""")
    gen_k1(a)
    gen_k2(a)
    a.raw('.section .rodata,"a"\n' + kd("k1_kernel", 256) + kd("k2_kernel", 256))
    txt = a.finish()
    open(out, "w").write(txt)
    print("wrote", out, "lines", txt.count("\n"), "pads", a.npad)


if __name__ == "__main__":
    main(sys.argv[1] if len(sys.argv) > 1 else f"cdna_kernels/{NAME}.s")
```

```python
import sys
sys.path.insert(0, "exp")
from asmlib import Asm, VmQ, merge

NAME = "recurrent_scan__linear_kernel_hedgehog__dense_activation_squared_relu__prompt"

WS_H = 0
WS_PQ = 8 << 20
WS_PART = 12 << 20
WS_KVF = 14 << 20
WS_SIZE = 16 << 20

LOG2E = "0x3fb8aa3b"


def srd(a, d, lo, nbytes):
    a(f"""
    s_mov_b32 s{d}, s{lo}
    s_and_b32 s{d+1}, s{lo+1}, 0xffff
    s_mov_b32 s{d+2}, {nbytes}
    s_mov_b32 s{d+3}, 0x20000
    """)


import os
PROF = os.environ.get("PROF", "") != ""
PF1 = os.environ.get("PF1", "0") == "1"
PFR = os.environ.get("PFR", "1") == "1"
PF2 = os.environ.get("PF2", "1") == "1"
PFW = os.environ.get("PFW", "1") == "1"
STF = os.environ.get("STF", "")
WS_PROF = 15 << 20


STAMP_SLOT = {k: i for i, k in enumerate(eval(os.environ.get('SLOTS', '[0, 1, 2, 3, 4, 5, 6, 7, 8, 11, 12]')))}


def stamp(a, idx, clk=False):
    if PROF:
        if idx in STAMP_SLOT:
            b = 80 + 2 * STAMP_SLOT[idx]
            a(f"{'s_memtime' if clk else 's_memrealtime'} s[{b}:{b+1}]")


def stamp_flush(a, kern, n, vt=250):
    if not PROF:
        return
    a("s_waitcnt lgkmcnt(0)")
    a(f"""
    s_lshl_b32 s49, s2, 3
    s_add_u32 s49, s49, s46
    s_lshl_b32 s49, s49, 6
    s_add_u32 s49, s49, {WS_PROF + kern*131072}
    v_mov_b32 v{vt}, 0
    s_mov_b64 exec, 1
    """)
    for i in range(n):
        if i not in STAMP_SLOT:
            continue
        a(f"v_mov_b32 v{vt+1}, s{80+2*STAMP_SLOT[i]}")
        a(f"buffer_store_dword v{vt+1}, v{vt}, s[32:35], s49 offen offset:{4*i}")
        a("s_nop 1")
    a("s_mov_b64 exec, -1")


def vr(b, n):
    return f"v[{b}:{b+n-1}]"


def softmax_units(a, units, sl2e):
    def each(f):
        for u in units:
            a(f(u))
    P = lambda u, r: f"v{u['P']+r}"
    T = lambda u, r: f"v{u['T']+r}"
    each(lambda u: f"v_max3_f32 {T(u,8)}, {P(u,0)}, {P(u,1)}, {P(u,2)}")
    each(lambda u: f"v_max3_f32 {T(u,9)}, -{P(u,0)}, -{P(u,1)}, -{P(u,2)}")
    each(lambda u: f"v_max_f32 {T(u,8)}, {T(u,8)}, {P(u,3)}")
    each(lambda u: f"v_max_f32_e64 {T(u,9)}, {T(u,9)}, -{P(u,3)}")

    def allreduce(op):
        each(lambda u: f"v_permlane32_swap_b32 {T(u,8)}, {T(u,9)}")
        each(lambda u: f"{op} {T(u,10)}, {T(u,8)}, {T(u,9)}")
        each(lambda u: f"v_mov_b32 {T(u,11)}, {T(u,10)}")
        each(lambda u: f"v_permlane16_swap_b32 {T(u,10)}, {T(u,11)}")
        each(lambda u: f"{op} {T(u,8)}, {T(u,10)}, {T(u,11)}")
        each(lambda u: f"v_mov_b32 {T(u,9)}, {T(u,8)}")
        each(lambda u: f"v_permlane32_swap_b32 {T(u,8)}, {T(u,9)}")
    allreduce("v_max_f32")
    S = lambda u: u.get('S', sl2e)
    each(lambda u: f"v_mul_f32 {T(u,8)}, {S(u)}, {T(u,8)}")
    each(lambda u: f"v_mul_f32 {T(u,9)}, {S(u)}, {T(u,9)}")
    for r in range(4):
        each(lambda u: f"v_fma_f32 {T(u,r)}, {P(u,r)}, {S(u)}, -{T(u,8)}")
        each(lambda u: f"v_fma_f32 {T(u,4+r)}, -{P(u,r)}, {S(u)}, -{T(u,9)}")
    for r in range(8):
        each(lambda u: f"v_exp_f32 {T(u,r)}, {T(u,r)}")
    each(lambda u: f"v_add_f32 {T(u,8)}, {T(u,0)}, {T(u,1)}")
    each(lambda u: f"v_add_f32 {T(u,9)}, {T(u,4)}, {T(u,5)}")
    each(lambda u: f"v_add_f32 {T(u,10)}, {T(u,2)}, {T(u,3)}")
    each(lambda u: f"v_add_f32 {T(u,11)}, {T(u,6)}, {T(u,7)}")
    each(lambda u: f"v_add_f32 {T(u,8)}, {T(u,8)}, {T(u,10)}")
    each(lambda u: f"v_add_f32 {T(u,9)}, {T(u,9)}, {T(u,11)}")
    allreduce("v_add_f32")
    each(lambda u: f"v_rcp_f32 {T(u,8)}, {T(u,8)}")
    each(lambda u: f"v_rcp_f32 {T(u,9)}, {T(u,9)}")
    for r in range(4):
        each(lambda u: f"v_mul_f32 {T(u,r)}, {T(u,r)}, {T(u,8)}")
        each(lambda u: f"v_mul_f32 {T(u,4+r)}, {T(u,4+r)}, {T(u,9)}")
    for r in range(4):
        each(lambda u: f"v_cvt_pk_bf16_f32 v{u['O']+r}, {T(u,2*r)}, {T(u,2*r+1)}")


K1_NS = 3
K1_A, K1_Q, K1_H = 0, 49152, 98304
K1_WPHI = 147456
K1_RS = 148480
K1_CS = K1_RS + 1024
K1_LDS = K1_CS + 4096


def gen_k1(a):
    a.raw(".globl k1_kernel\n.p2align 8\n.type k1_kernel,@function\nk1_kernel:")
    a(f"""
    s_cmp_ge_u32 s2, 256
    s_cbranch_scc1 K1_END
    s_load_dwordx4 s[4:7], s[0:1], 0
    s_load_dwordx4 s[8:11], s[0:1], 16
    s_load_dwordx4 s[12:15], s[0:1], 40
    s_load_dwordx2 s[16:17], s[0:1], 88
    s_load_dwordx2 s[18:19], s[0:1], 56
    """)
    stamp(a, 0)
    stamp(a, 14, True)
    a(f"""
    v_lshrrev_b32 v4, 6, v0
    v_and_b32 v1, 63, v0
    v_and_b32 v2, 15, v0
    v_bfe_u32 v3, v0, 4, 2
    v_readfirstlane_b32 s46, v4
    s_and_b32 s50, s2, 7             ; xcd
    s_lshr_b32 s51, s2, 3            ; j
    s_and_b32 s52, s50, 1
    s_lshl_b32 s52, s52, 3
    s_and_b32 s53, s51, 7
    s_add_u32 s44, s52, s53          ; rb
    s_lshr_b32 s52, s50, 1
    s_lshl_b32 s52, s52, 2
    s_lshr_b32 s53, s51, 3
    s_add_u32 s45, s52, s53          ; cb
    s_and_b32 s43, s45, 1            ; par
    s_and_b32 s47, s46, 3            ; rg
    s_lshr_b32 s48, s46, 2           ; role
    s_mov_b32 s55, {LOG2E}
    v_lshlrev_b32 v37, 4, v1         ; lane*16
    s_lshl_b32 s54, s46, 11
    """)
    a(f"""
    s_lshl_b32 s50, s44, 7
    s_lshl_b32 s51, s46, 4
    s_add_u32 s50, s50, s51
    v_lshrrev_b32 v4, 3, v1
    v_add_u32 v4, s50, v4
    v_lshlrev_b32 v4, 10, v4
    v_and_b32 v5, 7, v1
    v_xor_b32 v6, v5, v3
    v_lshl_add_u32 v10, v6, 4, v4
    v_xor_b32 v6, 4, v6
    v_lshl_add_u32 v11, v6, 4, v4
    v_add_u32 v11, 0x2000, v11
    """)
    a(f"""
    s_and_b32 s50, s46, 1
    s_lshl_b32 s50, s50, 2
    v_or_b32 v4, s50, v3
    v_lshlrev_b32 v4, 1, v4
    v_xor_b32 v4, v4, v2             ; u
    s_lshl_b32 s51, s46, 3
    v_add_u32 v5, s51, v3            ; row (e=0)
    v_lshrrev_b32 v6, 2, v4
    v_min_u32 v6, 2, v6              ; seg
    v_and_b32 v7, 3, v4
    v_lshlrev_b32 v6, 10, v6
    v_lshl_add_u32 v6, v7, 4, v6
    v_mul_u32_u24 v7, 3072, v5
    s_lshl_b32 s51, s45, 6
    v_add3_u32 v12, v6, v7, s51
    v_add_u32 v13, {4*3072}, v12
    v_min_u32 v6, 13, v4
    s_lshl_b32 s50, s43, 1
    v_add_u32 v6, s50, v6
    v_subrev_u32 v7, 14, v6
    v_min_u32 v6, v6, v7
    v_mul_u32_u24 v7, 3584, v5
    s_mul_i32 s51, s45, 224
    v_lshl_add_u32 v6, v6, 4, v7
    v_add_u32 v14, s51, v6
    v_add_u32 v15, {4*3584}, v14
    """)
    a("s_waitcnt lgkmcnt(0)")
    srd(a, 20, 4, 2048 * 1024)
    srd(a, 24, 6, 512 * 3072)
    srd(a, 28, 12, 512 * 3584)
    q = VmQ(a)

    def dma(s):
        slot = s % K1_NS
        o = slot * 16384
        return [
            f"s_movk_i32 s57, {s*128}\ns_add_u32 m0, s54, {K1_A + o}\nbuffer_load_dwordx4 v10, s[20:23], s57 offen lds",
            f"s_add_u32 m0, s54, {K1_A + o + 1024}\nbuffer_load_dwordx4 v11, s[20:23], s57 offen lds",
            f"s_mov_b32 s58, {s*64*3072}\ns_add_u32 m0, s54, {K1_Q + o}\nbuffer_load_dwordx4 v12, s[24:27], s58 offen lds",
            f"s_add_u32 m0, s54, {K1_Q + o + 1024}\nbuffer_load_dwordx4 v13, s[24:27], s58 offen lds",
            f"s_mov_b32 s59, {s*64*3584}\ns_add_u32 m0, s54, {K1_H + o}\nbuffer_load_dwordx4 v14, s[28:31], s59 offen lds",
            f"s_add_u32 m0, s54, {K1_H + o + 1024}\nbuffer_load_dwordx4 v15, s[28:31], s59 offen lds",
        ]

    for s in range(2):
        for d in dma(s):
            a(d)
            q.issue(("st", s))
    srd(a, 32, 16, WS_SIZE)
    srd(a, 36, 14, 3584)
    srd(a, 64, 8, 16384)
    if PFW:
        srd(a, 68, 18, 1792 * 1024)
        srd(a, 72, 10, 512 * 1024)
    if PFR:
        a(f"""
        s_and_b32 s50, s2, 7
        s_lshr_b32 s51, s2, 3            ; j
        s_movk_i32 s62, 128
        s_cmp_eq_u32 s47, 1
        s_cselect_b32 s76, s24, s20
        s_cselect_b32 s77, s25, s21
        s_cselect_b32 s78, s26, s22
        s_cselect_b32 s62, {64*3072}, s62
        s_cmp_eq_u32 s47, 2
        s_cselect_b32 s76, s28, s76
        s_cselect_b32 s77, s29, s77
        s_cselect_b32 s78, s30, s78
        s_cselect_b32 s62, {64*3584}, s62
        s_mov_b32 s79, 0x20000
        s_and_b32 s52, s50, 1
        s_lshl_b32 s52, s52, 10
        s_lshl_b32 s53, s51, 5
        s_add_u32 s52, s52, s53
        s_lshr_b32 s53, s47, 1
        s_lshl_b32 s53, s53, 4
        s_add_u32 s52, s52, s53
        v_add_u32 v4, s52, v2
        v_lshlrev_b32 v4, 10, v4         ; x variant
        s_lshr_b32 s50, s50, 1           ; xcd>>1
        v_lshrrev_b32 v5, 3, v2
        s_lshl_b32 s52, s51, 1
        v_add_u32 v5, s52, v5
        v_and_b32 v6, 7, v2
        v_min_u32 v7, 5, v6
        v_lshrrev_b32 v8, 1, v7
        v_and_b32 v7, 1, v7
        v_lshlrev_b32 v8, 10, v8
        v_lshl_add_u32 v8, v7, 7, v8
        v_mul_u32_u24 v7, 3072, v5
        s_lshl_b32 s52, s50, 8
        v_add3_u32 v7, v7, v8, s52
        v_min_u32 v6, 6, v6
        v_mul_u32_u24 v8, 3584, v5
        v_lshl_add_u32 v8, v6, 7, v8
        s_mul_i32 s52, s50, 896
        v_add_u32 v8, s52, v8            ; w1 variant
        s_cmp_eq_u32 s47, 1
        s_cselect_b64 s[52:53], -1, 0
        s_cmp_eq_u32 s47, 2
        s_cselect_b64 s[50:51], -1, 0
        v_cndmask_b32 v4, v4, v7, s[52:53]
        v_cndmask_b32 v254, v4, v8, s[50:51]
        """)
    a(f"""
    s_mov_b32 m0, {K1_WPHI}
    s_lshl_b32 s51, s45, 10
    buffer_load_dwordx4 v37, s[64:67], s51 offen lds
    s_lshl_b32 s50, s2, 8
    s_add_u32 s50, s50, {WS_KVF}
    v_lshlrev_b32 v4, 2, v1
    v_mov_b32 v5, -1
    buffer_store_dword v5, v4, s[32:35], s50 offen
    """)
    q.issue("wphi")
    q.issue("sent")
    stamp(a, 1)
    FS = [64, 100]
    ACC = 136
    RSUM, RSQ, CSA = 192, 196, 200
    ONES = 228
    a(f"""
    v_lshrrev_b32 v4, 1, v2
    v_xor_b32 v4, v4, v3
    v_lshlrev_b32 v4, 4, v4
    s_lshl_b32 s50, s47, 5
    s_lshl_b32 s51, s48, 4
    s_add_u32 s51, s51, s50
    v_add_u32 v5, s51, v2
    v_lshl_add_u32 v16, v5, 7, v4
    v_xor_b32 v17, 64, v16
    v_xor_b32 v18, 0x800, v16
    v_xor_b32 v19, 0x800, v17
    v_lshlrev_b32 v4, 3, v5
    v_add_u32 v33, {K1_RS}, v4
    v_xor_b32 v35, 0x80, v33
    s_lshl_b32 s50, s47, 10
    s_lshl_b32 s51, s48, 9
    s_add_u32 s51, s51, {K1_CS}
    s_add_u32 s50, s50, s51
    v_lshlrev_b32 v4, 4, v3
    v_add_u32 v34, s50, v4
    v_add_u32 v36, s51, v4
    v_lshrrev_b32 v4, 2, v2
    v_and_b32 v5, 1, v3
    v_lshl_or_b32 v5, v5, 2, v4
    v_lshlrev_b32 v5, 5, v5
    v_lshl_add_u32 v6, v3, 3, v4     ; row = 8g + (i>>2)
    v_lshl_add_u32 v5, v6, 8, v5
    v_and_b32 v6, 3, v2
    v_lshl_add_u32 v5, v6, 3, v5
    s_mul_i32 s50, s48, {K1_H - K1_Q}
    s_add_u32 s50, s50, {K1_Q}
    v_add_u32 v232, s50, v5
    """)
    for t in range(1, 7):
        a(f"v_xor_b32 v{232+t}, {t << 5}, v232")
    for r in range(ACC, ONES):
        a(f"v_mov_b32 v{r}, 0")
    for r in range(4):
        a(f"v_mov_b32 v{ONES+r}, 0x3f803f80")
    a(f"""
    v_lshl_add_u32 v8, v3, 2, 0
    v_lshrrev_b32 v9, 2, v2
    v_add_u32 v8, v8, v9
    v_lshlrev_b32 v8, 5, v8
    v_and_b32 v9, 3, v2
    v_lshl_add_u32 v8, v9, 3, v8
    v_add_u32 v38, {K1_WPHI}, v8
    s_lshl_b32 s42, s44, 3
    s_lshl_b32 s50, s47, 1
    s_add_u32 s42, s42, s50
    """)
    a("s_cmp_eq_u32 s48, 1")
    a("s_cbranch_scc1 K1_HPATH")

    def k1_pf(sfx):
        return (f"""
        s_and_b32 s50, s2, 7
        s_lshr_b32 s51, s2, 3            ; j
        s_cmp_ge_u32 s46, 4
        s_cbranch_scc1 K1_PF_W{sfx}
        s_and_b32 s40, s50, 1
        s_lshl_b32 s40, s40, 20
        s_lshl_b32 s41, s51, 15
        s_add_u32 s40, s40, s41
        s_lshl_b32 s41, s46, 13
        s_add_u32 s40, s40, s41
        v_lshlrev_b32 v4, 7, v1
        buffer_load_dword v255, v4, s[20:23], s40 offen
        s_branch K1_PF_E{sfx}
        K1_PF_W{sfx}:
        s_and_b32 s41, s46, 1
        s_lshl_b32 s41, s41, 3
        s_lshl_b32 s40, s51, 4
        s_add_u32 s40, s40, s41
        v_lshrrev_b32 v4, 3, v1
        v_add_u32 v4, s40, v4            ; row
        v_and_b32 v5, 7, v1
        s_lshr_b32 s50, s50, 1           ; xcd>>1
        s_cmp_ge_u32 s46, 6
        s_cbranch_scc1 K1_PF_H{sfx}
        v_min_u32 v5, 5, v5
        v_lshrrev_b32 v6, 1, v5
        v_and_b32 v5, 1, v5
        v_lshlrev_b32 v6, 10, v6
        v_lshl_add_u32 v6, v5, 7, v6
        s_movk_i32 s41, 3072
        v_mul_lo_u32 v4, v4, s41
        v_add_u32 v4, v4, v6
        s_lshl_b32 s50, s50, 8
        buffer_load_dword v255, v4, s[24:27], s50 offen
        s_branch K1_PF_E{sfx}
        K1_PF_H{sfx}:
        s_movk_i32 s41, 3584
        v_mul_lo_u32 v4, v4, s41
        v_lshl_add_u32 v4, v5, 7, v4
        s_mul_i32 s50, s50, 896
        buffer_load_dword v255, v4, s[28:31], s50 offen
        K1_PF_E{sfx}:
        """)

    PKI, VI, QXI = 0, 16384, 24576

    def path(H, q):
        nt = 7 if H else 6
        if H:
            a(f"""
            s_mul_i32 s50, s45, 224
            s_lshl_b32 s51, s43, 5
            s_add_u32 s51, s51, s50
            v_lshlrev_b32 v4, 3, v3
            v_add_u32 v5, s51, v4
            s_mul_i32 s51, s43, 192
            s_sub_u32 s51, 192, s51
            s_add_u32 s51, s51, s50
            v_add_u32 v6, s51, v4
            """)
            for t in range(6):
                a(f"buffer_load_dwordx2 {vr(40+2*t,2)}, v5, s[36:39], 0 offen offset:{32*t}")
                q.issue("bias")
            a(f"buffer_load_dwordx2 {vr(52,2)}, v6, s[36:39], 0 offen")
            q.issue("bias")

        def reads(s, kk):
            o = (s % K1_NS) * 16384
            f = FS[kk]
            r = []
            for mi in range(2):
                r.append(f"ds_read_b128 {vr(f+4*mi,4)}, v{16+kk+2*mi} offset:{o}")
            for t in range(nt):
                r.append(f"ds_read_b64_tr_b16 {vr(f+8+4*t,2)}, v{232+t} offset:{o + kk*8192}")
                r.append(f"ds_read_b64_tr_b16 {vr(f+8+4*t+2,2)}, v{232+t} offset:{o + kk*8192 + 1024}")
            return r

        def compute(s, kk, other):
            f = FS[kk]
            mf = []
            for t in range(nt):
                for mi in range(2):
                    c = ACC + 8 * t + 4 * mi
                    mf.append(f"v_mfma_f32_16x16x32_bf16 {vr(c,4)}, {vr(f+8+4*t,4)}, {vr(f+4*mi,4)}, {vr(c,4)}")
            mf.append(f"v_mfma_f32_16x16x32_bf16 {vr(RSUM,4)}, {vr(ONES,4)}, {vr(f,4)}, {vr(RSUM,4)}")
            mf.append(f"v_mfma_f32_16x16x32_bf16 {vr(RSQ,4)}, {vr(f,4)}, {vr(f,4)}, {vr(RSQ,4)}")
            for x in merge(mf, other, ratio=int(os.environ.get("RATIO", "2"))):
                a(x)

        def colsum(s):
            lab = f"K1_CS_{int(H)}_{s}"
            for v in range(4):
                if v < 3:
                    a(f"s_cmp_lg_u32 s47, {v}")
                    a(f"s_cbranch_scc1 {lab}_{v+1}")
                for kk in range(2):
                    f = FS[kk]
                    ks = 2 * s + kk
                    for t in range(nt):
                        if (t & 3) == (v + ks) & 3:
                            a(f"v_mfma_f32_16x16x32_bf16 {vr(CSA+4*t,4)}, {vr(f+8+4*t,4)}, {vr(ONES,4)}, {vr(CSA+4*t,4)}")
                if v < 3:
                    a(f"s_branch {lab}_e")
                    a(f"{lab}_{v+1}:")
            a(f"{lab}_e:")

        def k1_pfw():
            lab = f"K1_PW_{int(H)}"
            return [f"""
                s_lshr_b32 s51, s2, 3
                v_lshlrev_b32 v4, 7, v1
                s_mul_i32 s40, s51, 57344
                s_lshl_b32 s41, s46, 13
                s_add_u32 s40, s40, s41
                s_lshl_b32 s41, s51, 14
                s_cmp_eq_u32 s46, 7
                s_cbranch_scc1 {lab}_o
                buffer_load_dword v255, v4, s[68:71], s40 offen
                s_branch {lab}_e
                {lab}_o:
                buffer_load_dword v255, v4, s[72:75], s41 offen
                {lab}_e:
                """, f"""
                s_add_u32 s41, s41, 8192
                buffer_load_dword v255, v4, s[72:75], s41 offen
                """]

        def touch(st):
            return f"s_mul_i32 s63, s62, {st}\nbuffer_load_dword v255, v254, s[76:79], s63 offen"
        PFD = int(os.environ.get("PFD", "5"))
        if PFR and not H:
            for st in range(2, PFD):
                a(touch(st))
                q.issue("pf")
        q.wait([("st", 0)])
        stamp(a, 2)
        a("s_barrier")
        for r in reads(0, 0):
            a(r)
        for s in range(8):
            if s in (1, 2, 4, 6) and not os.environ.get('SLOTS'):
                stamp(a, 3 + (1, 2, 4, 6).index(s))
            a("s_waitcnt lgkmcnt(0)")
            other = reads(s, 1)
            if s == 0:
                for d in dma(2):
                    other.append(d)
                    q.issue(("st", 2))
            if PFR and not H and s + PFD < 8:
                other.append(touch(s + PFD))
                q.issue("pf")
            if PF1 and s == int(os.environ.get("PF1S", "0")):
                other.append(k1_pf("h" if H else "q"))
                q.issue("pf")
            if PFW and s == 7:
                for d in k1_pfw():
                    other.append(d)
                    q.issue("pfw")
            compute(s, 0, other)
            q.wait([("st", s + 1)] if s + 1 < 8 else [], lgkm=0)
            a("s_barrier")
            colsum(s)
            other = []
            if s + 1 < 8:
                other += reads(s + 1, 0)
            if s + K1_NS < 8:
                for d in dma(s + K1_NS):
                    other.append(d)
                    q.issue(("st", s + K1_NS))
            compute(s, 1, other)
        stamp(a, 7)
        a(f"""
        v_and_b32 v4, 3, v2
        v_lshrrev_b32 v5, 2, v2
        v_cmp_eq_u32 s[40:41], 1, v4
        v_cmp_eq_u32 s[50:51], 2, v4
        v_cmp_eq_u32 s[56:57], 3, v4
        v_cmp_eq_u32 s[58:59], v5, v3
        v_cmp_eq_u32 s[60:61], 0, v2
        s_nop 3
        s_mov_b64 exec, s[60:61]
        """)
        for t in range(nt):
            a(f"ds_write_b128 v34, {vr(CSA+4*t,4)} offset:{64*t}")
        a(f"""
        s_mov_b64 exec, -1
        v_cndmask_b32 v7, v{RSQ}, v{RSQ+1}, s[40:41]
        v_cndmask_b32 v7, v7, v{RSQ+2}, s[50:51]
        v_cndmask_b32 v7, v7, v{RSQ+3}, s[56:57]
        v_mov_b32 v6, v{RSUM}
        s_mov_b64 exec, s[58:59]
        ds_write_b64 v33, v[6:7]
        s_mov_b64 exec, -1
        ds_read_b64_tr_b16 v[56:57], v38
        ds_read_b64_tr_b16 v[58:59], v38 offset:512
        s_waitcnt lgkmcnt(0)
        s_barrier
        """)
        stamp(a, 8)
        CS = 64
        a("""
        ds_read_b64 v[4:5], v33
        ds_read_b64 v[6:7], v35
        """)
        for t in range(nt):
            a(f"ds_read_b128 {vr(CS+4*t,4)}, v36 offset:{64*t}")
        for t in range(nt):
            a(f"ds_read_b128 {vr(100+4*t,4)}, v36 offset:{1024+64*t}")
        a("s_waitcnt lgkmcnt(14)" if nt == 7 else "s_waitcnt lgkmcnt(12)")
        a("""
        v_mul_f32 v4, 0x3b000000, v4
        v_mul_f32 v5, 0x3b000000, v5
        v_mul_f32 v6, 0x3b000000, v6
        v_mul_f32 v7, 0x3b000000, v7
        v_fma_f32 v5, -v4, v4, v5
        v_fma_f32 v7, -v6, v6, v7
        v_max_f32 v5, 0, v5
        v_max_f32 v7, 0, v7
        v_add_f32 v5, 0x3727c5ac, v5
        v_add_f32 v7, 0x3727c5ac, v7
        v_rsq_f32 v60, v5
        v_rsq_f32 v61, v7
        v_sub_f32 v20, 0, v4
        v_sub_f32 v21, 0, v6
        v_mul_f32 v62, v20, v60
        v_mul_f32 v63, v21, v61
        v_mul_f32 v22, s55, v60
        v_mul_f32 v23, s55, v61
        """)
        for t in range(nt):
            a(f"ds_read_b128 {vr(192+4*t,4)}, v36 offset:{2048+64*t}")
        a(f"s_waitcnt lgkmcnt({nt})")
        for r in range(4 * nt):
            a(f"v_add_f32 v{CS+r}, v{CS+r}, v{100+r}")
        for t in range(nt):
            a(f"ds_read_b128 {vr(100+4*t,4)}, v36 offset:{3072+64*t}")
        a(f"s_waitcnt lgkmcnt({nt})")
        for r in range(4 * nt):
            a(f"v_add_f32 v{CS+r}, v{CS+r}, v{192+r}")
        a("s_waitcnt lgkmcnt(0)")
        for r in range(4 * nt):
            a(f"v_add_f32 v{CS+r}, v{CS+r}, v{100+r}")
        a(f"""
        s_lshl_b32 s50, s42, 5
        s_lshl_b32 s51, s45, 1
        s_add_u32 s50, s50, s51
        s_lshl_b32 s50, s50, 10
        s_add_u32 s60, s50, {WS_PQ}
        s_add_u32 s61, s60, 32768
        s_lshl_b32 s50, s47, 10
        s_add_u32 s50, s50, {QXI}
        v_lshlrev_b32 v39, 3, v1
        v_add_u32 v39, s50, v39
        """)
        if H:
            q.wait(["bias"])
            BU = 100
            for t in range(7):
                a(f"""
                v_lshlrev_b32 v{BU+4*t}, 16, v{40+2*t}
                v_and_b32 v{BU+4*t+1}, 0xffff0000, v{40+2*t}
                v_lshlrev_b32 v{BU+4*t+2}, 16, v{41+2*t}
                v_and_b32 v{BU+4*t+3}, 0xffff0000, v{41+2*t}
                """)
            a(f"""
            s_lshr_b32 s50, s45, 1
            s_mul_i32 s50, s50, 7
            s_lshl_b32 s51, s43, 2
            s_add_u32 s51, s51, s50
            s_add_u32 s50, s50, 3
            s_lshl_b32 s51, s51, 10
            s_lshl_b32 s50, s50, 10
            s_lshl_b32 s52, s43, 3
            s_add_u32 s50, s50, s52
            s_mul_i32 s53, s42, {56*1024}
            s_add_u32 s52, s53, {56*1024}
            s_add_u32 s56, s51, s52
            s_add_u32 s57, s51, s53          ; mi=1
            s_add_u32 s58, s50, s52
            s_add_u32 s59, s50, s53
            """)
            OUT = 192

            def hepi(mi):
                for t in range(7):
                    c = ACC + 8 * t + 4 * mi
                    tmp = 128 + 4 * (t & 1)
                    for r in range(4):
                        a(f"v_fma_f32 v{tmp+r}, v{62+mi}, v{CS+4*t+r}, v{BU+4*t+r}")
                    for r in range(4):
                        a(f"v_fma_f32 v{c+r}, v{c+r}, v{60+mi}, v{tmp+r}")
                    for r in range(4):
                        a(f"v_max_f32 v{c+r}, 0, v{c+r}")
                    for r in range(4):
                        a(f"v_mul_f32 v{c+r}, v{c+r}, v{c+r}")
                    o = OUT + 16 * mi + 2 * t
                    a(f"v_cvt_pk_bf16_f32 v{o}, v{c}, v{c+1}")
                    a(f"v_cvt_pk_bf16_f32 v{o+1}, v{c+2}, v{c+3}")
                    if t in (1, 3, 5):
                        a(f"buffer_store_dwordx4 {vr(o-2,4)}, v37, s[32:35], s{56+mi} offen offset:{(t>>1)*1024} {STF}")
                    if t == 6:
                        a(f"buffer_store_dwordx2 {vr(o,2)}, v37, s[32:35], s{58+mi} offen {STF}")
            hepi(0)
            a("s_barrier")
            a("""
            ds_read_b64 v[24:25], v39
            ds_read_b64 v[26:27], v39 offset:512
            """)
            hepi(1)
            a("s_waitcnt lgkmcnt(0)")
            units = []
            for hh in range(2):
                u = dict(P=136 + 4 * hh, T=64 + 12 * hh, O=144 + 4 * hh, hh=hh, S="v22")
                a(f"v_mfma_f32_16x16x16_bf16 {vr(u['P'],4)}, {vr(56+2*hh,2)}, {vr(24+2*hh,2)}, 0")
                units.append(u)
            a(f"""
            s_lshr_b32 s50, s47, 1
            s_and_b32 s51, s47, 1
            v_lshrrev_b32 v4, 2, v2
            v_lshl_add_u32 v4, v3, 3, v4     ; row = 8g + (i>>2)
            v_and_b32 v5, 3, v2
            v_lshlrev_b32 v5, 3, v5
            v_lshl_add_u32 v8, v4, 6, v5
            s_lshl_b32 s52, s50, 13
            s_lshl_b32 s53, s51, 5
            s_add_u32 s52, s52, s53
            s_add_u32 s52, s52, {PKI}
            v_add_u32 v8, s52, v8
            v_lshl_add_u32 v9, v4, 5, v5
            s_lshl_b32 s52, s50, 12
            s_add_u32 s52, s52, {VI}
            v_add_u32 v9, s52, v9
            s_lshl_b32 s52, s44, 17
            s_lshl_b32 s53, s45, 1
            s_add_u32 s53, s53, s50          ; head
            s_lshl_b32 s53, s53, 11
            s_add_u32 s52, s52, s53
            s_lshl_b32 s53, s51, 4
            s_add_u32 s52, s52, s53
            s_add_u32 s52, s52, {WS_PART}
            s_add_u32 s53, s52, 65536
            v_lshlrev_b32 v4, 5, v1
            """)
            softmax_units(a, units, "s55")
            for u in units:
                a(f"buffer_store_dwordx4 {vr(u['O'],4)}, v37, s[32:35], s61 offen offset:{u['hh']*1024} {STF}")
            stamp(a, 9)
            a("s_barrier")
            stamp(a, 10)
            for kk in range(4):
                fa, fb = 152 + 8 * kk, 156 + 8 * kk
                a(f"""
                ds_read_b64_tr_b16 {vr(fa,2)}, v8 offset:{kk*2048}
                ds_read_b64_tr_b16 {vr(fa+2,2)}, v8 offset:{kk*2048+256}
                ds_read_b64_tr_b16 {vr(fb,2)}, v9 offset:{kk*1024}
                ds_read_b64_tr_b16 {vr(fb+2,2)}, v9 offset:{kk*1024+128}
                """)
            a("s_waitcnt lgkmcnt(0)")
            for kk in range(4):
                fa, fb = 152 + 8 * kk, 156 + 8 * kk
                c0 = "0" if kk == 0 else "v[44:47]"
                c1 = "0" if kk == 0 else "v[48:51]"
                a(f"v_mfma_f32_16x16x32_bf16 v[44:47], {vr(fa,4)}, {vr(fb,4)}, {c0}")
                a(f"v_mfma_f32_16x16x32_bf16 v[48:51], {vr(fa,4)}, {vr(ONES,4)}, {c1}")
            a(f"""
            buffer_store_dwordx4 v[44:47], v4, s[32:35], s52 offen {STF}
            buffer_store_dwordx4 v[48:51], v4, s[32:35], s53 offen {STF}
            """)
        else:
            PK2 = 192

            def fold(t, mi, scaled):
                c = ACC + 8 * t + 4 * mi
                for r in range(4):
                    a(f"v_fma_f32 v{c+r}, v{20+mi}, v{CS+4*t+r}, v{c+r}")
                if scaled:
                    for r in range(4):
                        a(f"v_mul_f32 v{c+r}, v{c+r}, v{60+mi}")
                o = PK2 + (t * 2 + mi) * 2
                a(f"v_cvt_pk_bf16_f32 v{o}, v{c}, v{c+1}")
                a(f"v_cvt_pk_bf16_f32 v{o+1}, v{c+2}, v{c+3}")
            a(f"""
            s_lshl_b32 s50, s47, 5
            v_add_u32 v4, s50, v2
            v_lshlrev_b32 v5, 3, v3
            v_lshl_add_u32 v6, v4, 6, v5
            v_lshl_add_u32 v7, v4, 5, v5     ; V write: m*32 + 8g
            """)
            for hh in range(2):
                fold(hh, 1, False)
                a(f"ds_write_b64 v39, {vr(PK2 + (hh*2+1)*2, 2)} offset:{hh*512}")
            for t in (2, 3):
                for mi in range(2):
                    fold(t, mi, False)
            units = []
            for hh in range(2):
                for mi in range(2):
                    k = hh * 2 + mi
                    u = dict(P=ACC + 8 * (2 + hh) + 4 * mi, T=88 + 12 * k, O=216 + 4 * k, hh=hh, mi=mi, S=f"v{22+mi}")
                    o = PK2 + ((2 + hh) * 2 + mi) * 2
                    a(f"v_mfma_f32_16x16x16_bf16 {vr(u['P'],4)}, {vr(56+2*hh,2)}, {vr(o,2)}, 0")
                    units.append(u)
            for t in (4, 5):
                for mi in range(2):
                    fold(t, mi, True)
            for hh in range(2):
                for mi in range(2):
                    o = PK2 + ((4 + hh) * 2 + mi) * 2
                    a(f"ds_write_b64 v7, {vr(o,2)} offset:{VI + hh*4096 + mi*512}")
            a("s_waitcnt lgkmcnt(4)")
            a("s_barrier")
            softmax_units(a, units, "s55")
            for u in units:
                base = PKI + u['hh'] * 8192 + u['mi'] * 1024
                a(f"ds_write_b64 v6, {vr(u['O'],2)} offset:{base}")
                a(f"ds_write_b64 v6, {vr(u['O']+2,2)} offset:{base+32}")
            units = []
            for hh in range(2):
                fold(hh, 0, False)
            for hh in range(2):
                u = dict(P=ACC + 8 * hh, T=88 + 12 * hh, O=168 + 4 * hh, hh=hh, S="v22")
                a(f"v_mfma_f32_16x16x16_bf16 {vr(u['P'],4)}, {vr(56+2*hh,2)}, {vr(PK2 + hh*4,2)}, 0")
                units.append(u)
            a("s_waitcnt lgkmcnt(0)")
            stamp(a, 9)
            a("s_barrier")
            stamp(a, 10)
            softmax_units(a, units, "s55")
            for u in units:
                a(f"buffer_store_dwordx4 {vr(u['O'],4)}, v37, s[32:35], s60 offen offset:{u['hh']*1024} {STF}")
        stamp(a, 11)
        if PROF:
            a("s_waitcnt vmcnt(0)")
        stamp(a, 12)
        stamp(a, 15, True)
        stamp_flush(a, 0, 16)
        a("s_branch K1_END")

    q2 = q.copy()
    path(False, q)
    a("K1_HPATH:")
    a("s_nop 4")
    path(True, q2)
    a("K1_END:")
    a("s_endpgm")


K2_NS = 11
K2_KV = K2_NS * 8192
K2_LDS = K2_KV + 65536
K2_NA = 12
K2_NST = 36
P_KVL, P_KVW = 15, 22


def gen_k2(a):
    a.raw(".globl k2_kernel\n.p2align 8\n.type k2_kernel,@function\nk2_kernel:")
    a(f"""
    s_cmp_ge_u32 s2, 256
    s_cbranch_scc1 K2_END
    s_load_dwordx2 s[4:5], s[0:1], 0
    s_load_dwordx2 s[6:7], s[0:1], 24
    s_load_dwordx4 s[8:11], s[0:1], 56
    s_load_dwordx2 s[12:13], s[0:1], 72
    s_load_dwordx2 s[16:17], s[0:1], 88
    """)
    stamp(a, 0)
    stamp(a, 14, True)
    a(f"""
    v_lshrrev_b32 v4, 6, v0
    v_and_b32 v1, 63, v0
    v_and_b32 v2, 15, v0
    v_bfe_u32 v3, v0, 4, 2
    v_readfirstlane_b32 s46, v4
    s_and_b32 s50, s2, 7             ; xcd
    s_lshr_b32 s51, s2, 3
    s_lshl_b32 s52, s50, 2
    s_and_b32 s53, s51, 3            ; mb_l
    s_add_u32 s60, s52, s53          ; mb
    s_lshr_b32 s61, s51, 2           ; nb
    s_mul_i32 s52, s53, 7
    s_mul_i32 s56, s61, 11
    s_add_u32 s52, s52, s56
    s_add_u32 s52, s52, s50          ; <= 21+77+7 = 105
    s_mul_i32 s56, s52, 147
    s_lshr_b32 s56, s56, 12
    s_mul_i32 s56, s56, 28
    s_sub_u32 s42, s52, s56
    s_and_b32 s42, s42, {int(os.environ.get("ROT2", "0"))}
    s_lshl_b32 s52, s53, 1
    s_add_u32 s52, s52, s61
    s_add_u32 s52, s52, s50
    s_and_b32 s43, s52, {int(os.environ.get("ROT3", "0"))}
    s_and_b32 s47, s46, 3            ; mt_l
    s_lshr_b32 s48, s46, 2           ; kh
    s_lshl_b32 s54, s46, 10          ; w*1024
    s_mov_b32 s55, {LOG2E}
    s_lshl_b32 s62, s60, 2
    s_add_u32 s62, s62, s47          ; mt
    s_movk_i32 s58, 4096
    """)
    a(f"""
    v_lshrrev_b32 v4, 3, v1
    s_lshl_b32 s50, s46, 3
    v_add_u32 v4, s50, v4
    v_and_b32 v5, 7, v1
    v_lshlrev_b32 v6, 1, v3
    v_xor_b32 v5, v5, v6
    v_lshlrev_b32 v5, 4, v5
    v_lshl_add_u32 v4, v4, 10, v5
    s_lshl_b32 s50, s61, 7
    v_add_u32 v10, s50, v4           ; vOffB
    v_lshlrev_b32 v17, 4, v1         ; lane*16
    s_mul_i32 s50, s62, 56
    s_add_u32 s50, s50, s48
    s_lshl_b32 s50, s50, 10
    v_add_u32 v11, s50, v17          ; vOffA (h)
    s_lshl_b32 s50, s62, 5
    s_lshl_b32 s51, s48, 1
    s_add_u32 s50, s50, s51
    s_lshl_b32 s50, s50, 10
    s_add_u32 s50, s50, {WS_PQ}
    v_add_u32 v12, s50, v17          ; vOffP
    """)
    a(f"""
    v_lshrrev_b32 v4, 2, v2
    v_lshl_add_u32 v4, v3, 2, v4
    s_lshl_b32 s50, s48, 5
    v_add_u32 v4, s50, v4
    v_lshrrev_b32 v5, 3, v2
    v_lshl_add_u32 v5, v3, 1, v5
    v_and_b32 v5, 3, v5
    v_lshlrev_b32 v5, 5, v5
    v_lshl_add_u32 v4, v4, 7, v5
    v_and_b32 v5, 3, v2
    v_lshl_add_u32 v13, v5, 3, v4
    v_xor_b32 v14, 32, v13
    v_xor_b32 v15, 64, v13
    v_xor_b32 v16, 96, v13
    v_add_u32 v236, 0x10000, v13
    v_add_u32 v237, 0x10000, v14
    v_add_u32 v238, 0x10000, v15
    v_add_u32 v239, 0x10000, v16
    """)
    a(f"""
    s_lshr_b32 s50, s2, 2            ; rec
    s_and_b32 s51, s2, 3
    s_lshl_b32 s52, s50, 11
    s_lshl_b32 s53, s51, 9
    s_add_u32 s52, s52, s53
    s_lshl_b32 s53, s46, 6
    s_add_u32 s52, s52, s53
    s_add_u32 s52, s52, {WS_PART}
    v_lshrrev_b32 v4, 2, v1
    v_lshlrev_b32 v4, 17, v4
    v_and_b32 v5, 3, v1
    v_lshl_add_u32 v4, v5, 4, v4
    v_add_u32 v36, s52, v4
    s_lshl_b32 s52, s50, 10
    s_lshl_b32 s53, s51, 8
    s_add_u32 s52, s52, s53
    s_lshl_b32 s53, s46, 5
    s_add_u32 s52, s52, s53
    s_add_u32 s52, s52, {WS_KVF}
    v_lshlrev_b32 v5, 3, v5
    v_add_u32 v37, s52, v5
    s_lshl_b32 s50, s46, 13
    s_add_u32 s50, s50, {WS_KVF}
    v_add_u32 v38, s50, v17
    s_lshl_b32 s50, s46, 13
    s_add_u32 s50, s50, {K2_KV}
    v_add_u32 v39, s50, v17
    s_lshl_b32 s50, s48, 11
    s_add_u32 s50, s50, {K2_KV}
    v_add_u32 v18, s50, v17
    """)
    a(f"""
    v_lshrrev_b32 v4, 3, v0
    v_and_b32 v5, 7, v0
    s_lshl_b32 s50, s60, 6
    v_add_u32 v6, s50, v4
    v_lshlrev_b32 v6, 10, v6
    v_lshlrev_b32 v7, 4, v5
    s_lshl_b32 s50, s61, 7
    v_add_u32 v7, s50, v7
    v_add_u32 v232, v6, v7
    v_mov_b32 v233, v7               ; b2 offset
    s_movk_i32 s50, 272
    v_mul_lo_u32 v6, v4, s50
    v_lshl_add_u32 v234, v5, 5, v6
    s_lshl_b32 s51, s47, 4
    v_add_u32 v6, s51, v2
    v_mul_lo_u32 v6, v6, s50
    v_lshl_add_u32 v6, v3, 4, v6
    s_mul_i32 s51, s48, {2*17408}
    v_add_u32 v235, s51, v6
    """)
    for r in range(136, 168):
        a(f"v_mov_b32 v{r}, 0")
    a("s_waitcnt lgkmcnt(0)")
    srd(a, 20, 4, 2048 * 1024)
    srd(a, 24, 6, 512 * 1024)
    srd(a, 28, 8, 1792 * 1024)
    srd(a, 32, 16, WS_SIZE)
    srd(a, 36, 10, 1024)
    srd(a, 64, 12, 2048 * 1024)
    q = VmQ(a)
    AR = 40
    NA = K2_NA
    BF = [88, 104, 120]
    KZ = [168, 184, 240]

    def dma(s):
        slot = s % K2_NS
        sr = "s[28:31]" if s < 28 else "s[24:27]"
        so = (s if s < 28 else s - 28) * 65536
        if os.environ.get("K2NOB"):
            so = 0
        return f"s_mov_b32 s56, {so}\ns_add_u32 m0, s54, {slot*8192}\nbuffer_load_dwordx4 v10, {sr}, s56 offen lds"

    frags = []
    for s in range(28):
        frags.append((s, 0))
    for s in range(28, 36):
        frags.append((s, 0))
        frags.append((s, 1))
    first_frag = {}
    for k, (s, e) in enumerate(frags):
        first_frag.setdefault(s, k)

    def aload(k):
        s, e = frags[k]
        r = AR + 4 * (k % NA)
        if os.environ.get("K2NOA"):
            return f"s_mov_b32 s57, 0\nbuffer_load_dwordx4 {vr(r,4)}, v11, s[32:35], s57 offen"
        if s < 28:
            return f"s_mov_b32 s57, {s*2048}\nbuffer_load_dwordx4 {vr(r,4)}, v11, s[32:35], s57 offen"
        return f"s_mov_b32 s57, {(s-28)*4096}\nbuffer_load_dwordx4 {vr(r,4)}, v12, s[32:35], s57 offen offset:{e*1024}"

    a("buffer_load_dwordx4 v[20:23], v36, s[32:35], 0 offen")
    q.issue("part")
    nextA = 0
    nextB = 0
    PRE = int(os.environ.get("PRE", "4"))
    for s in range(PRE):
        a(dma(s)); q.issue(("B", s)); nextB += 1
        a(aload(nextA)); q.issue(("A", nextA)); nextA += 1
    stamp(a, 1)
    q.wait(["part"])
    stamp(a, 2)
    for r in range(4):
        a(f"v_add_f32_dpp v{24+r}, v{20+r}, v{20+r} row_ror:8 row_mask:0xf bank_mask:0xf")
    for r in range(4):
        a(f"v_add_f32_dpp v{20+r}, v{24+r}, v{24+r} row_ror:4 row_mask:0xf bank_mask:0xf")
    for sw in ("v_permlane16_swap_b32", "v_permlane32_swap_b32"):
        for r in range(4):
            a(f"v_mov_b32 v{24+r}, v{20+r}")
        for r in range(4):
            a(f"{sw} v{20+r}, v{24+r}")
        for r in range(4):
            a(f"v_add_f32 v{20+r}, v{20+r}, v{24+r}")
    a("""
    v_cvt_pk_bf16_f32 v24, v20, v21
    v_cvt_pk_bf16_f32 v25, v22, v23
    v_min_u32 v24, 0xfffeffff, v24
    v_min_u32 v25, 0xfffeffff, v25
    s_mov_b64 exec, 15
    buffer_store_dwordx2 v[24:25], v37, s[32:35], 0 offen sc0 sc1
    s_mov_b64 exec, -1
    """)
    q.issue("kvst")

    def reads(s):
        slot = s % K2_NS
        f = BF[s % 3]
        r = []
        vb, off = (13, slot * 8192) if slot < 8 else (236, (slot - 8) * 8192)
        for t in range(4):
            r.append(f"ds_read_b64_tr_b16 {vr(f+4*t,2)}, v{vb+t} offset:{off}")
            r.append(f"ds_read_b64_tr_b16 {vr(f+4*t+2,2)}, v{vb+t} offset:{off+2048}")
        if s >= 28:
            kz = KZ[s % 3]
            hb = (s - 28) * 4096
            r.append(f"ds_read_b128 {vr(kz,4)}, v18 offset:{hb}")
            r.append(f"ds_read_b128 {vr(kz+4,4)}, v18 offset:{32768+hb}")
            r.append(f"ds_read_b128 {vr(kz+8,4)}, v18 offset:{hb+1024}")
            r.append(f"ds_read_b128 {vr(kz+12,4)}, v18 offset:{32768+hb+1024}")
        return r

    def kvloads():
        r = []
        for k in range(8):
            so = "0" if k < 4 else "s58"
            r.append(f"buffer_load_dwordx4 {vr(168+4*k,4)}, v38, s[32:35], {so} offen offset:{(k&3)*1024} sc1")
        return r

    q.wait([("B", 1)])
    a("s_barrier")
    lds_out = []

    def lds_issue(tag, n):
        lds_out.extend([tag] * n)

    def lds_need(tags):
        idx = -1
        for i, t in enumerate(lds_out):
            if t in tags:
                idx = i
        if idx < 0:
            return None
        n = len(lds_out) - 1 - idx
        del lds_out[:idx + 1]
        return min(n, 15) if n <= 15 else None if False else min(n, 15)

    for s0 in (0, 1):
        rr = reads(s0)
        for r in rr:
            a(r)
        lds_issue(("r", s0), len(rr))
    for s in range(K2_NST):
        K2ST = (0, 4, 10, 16, 22, 28)
        if s in K2ST:
            stamp(a, 3 + K2ST.index(s))
        f = BF[s % 3]
        k0 = first_frag[s]
        nfr = 1 if s < 28 else 2
        tags = [("A", k0 + nfr - 1)]
        even = (s & 1) == 0
        if even:
            tags += [("B", x) for x in (s + 2, s + 3) if x < K2_NST]
        if s == P_KVW:
            tags.append("kvf")
        ltags = [("r", s)]
        if even:
            ltags.append("kvw")
        ln = lds_need(ltags)
        q.wait(tags, lgkm=ln)
        if s == P_KVW:
            a("s_mov_b32 s49, 0")
            a("K2_KVCHK:")
            a("v_max_u32 v26, v168, v169")
            for r in range(170, 200, 2):
                a(f"v_max3_u32 v26, v26, v{r}, v{r+1}")
            a(f"""
            v_cmp_eq_u32 vcc, -1, v26
            s_cbranch_vccz K2_KVOK
            s_add_u32 s49, s49, 1
            s_cmp_gt_u32 s49, 100000
            s_cbranch_scc1 K2_KVOK
            s_sleep 4
            """)
            for x in kvloads():
                a(x)
            a("""
            s_waitcnt vmcnt(0)
            s_branch K2_KVCHK
            K2_KVOK:
            """)
        if even:
            a("s_barrier")
        other = []
        if s + 2 < K2_NST:
            rr = reads(s + 2)
            other += rr
            lds_issue(("r", s + 2), len(rr))
        if s in (P_KVW, P_KVW + 1):
            for r in range(4 * (s - P_KVW), 4 * (s - P_KVW) + 4):
                other.append(f"ds_write_b128 v39, {vr(168+4*r,4)} offset:{r*1024}")
                lds_issue("kvw", 1)
        if s == P_KVL:
            for x in kvloads():
                other.append(x)
                q.issue("kvf")
        if s == 16:
            other.append("buffer_load_dwordx4 v[28:31], v232, s[20:23], 0 offen")
            q.issue("x")
            other.append("buffer_load_dwordx4 v[32:35], v233, s[36:39], 0 offen")
            q.issue("b2")
        lim = (s if even else s - 1) + K2_NS
        for rep in range(3):
            if nextB < K2_NST and nextB <= lim:
                other.append(dma(nextB)); q.issue(("B", nextB)); nextB += 1
            if nextA < len(frags) and nextA - NA < k0:
                other.append(aload(nextA)); q.issue(("A", nextA)); nextA += 1
        if s < 28:
            ar = AR + 4 * (k0 % NA)
            mf = [f"v_mfma_f32_16x16x32_bf16 {vr(136+4*t,4)}, {vr(f+4*t,4)}, {vr(ar,4)}, {vr(136+4*t,4)}" for t in range(4)]
            for x in merge(mf, other):
                a(x)
        else:
            kz = KZ[s % 3]
            p0 = AR + 4 * (k0 % NA)
            p1 = AR + 4 * ((k0 + 1) % NA)
            mf = [
                f"v_mfma_f32_16x16x32_bf16 v[200:203], {vr(kz,4)}, {vr(p0,4)}, 0",
                f"v_mfma_f32_16x16x32_bf16 v[204:207], {vr(kz+4,4)}, {vr(p0,4)}, 0",
                f"v_mfma_f32_16x16x32_bf16 v[208:211], {vr(kz+8,4)}, {vr(p1,4)}, 0",
                f"v_mfma_f32_16x16x32_bf16 v[212:215], {vr(kz+12,4)}, {vr(p1,4)}, 0",
            ]
            for x in merge(mf, other):
                a(x)
            a("""
            v_add_f32 v220, 0x358637bd, v204
            v_add_f32 v221, 0x358637bd, v212
            v_rcp_f32 v220, v220
            v_rcp_f32 v221, v221
            """)
            for r in range(4):
                a(f"v_mul_f32 v{200+r}, v{200+r}, v220")
            for r in range(4):
                a(f"v_mul_f32 v{208+r}, v{208+r}, v221")
            a("""
            v_cvt_pk_bf16_f32 v216, v200, v201
            v_cvt_pk_bf16_f32 v217, v202, v203
            v_cvt_pk_bf16_f32 v218, v208, v209
            v_cvt_pk_bf16_f32 v219, v210, v211
            """)
            for t in range(4):
                a(f"v_mfma_f32_16x16x32_bf16 {vr(152+4*t,4)}, {vr(f+4*t,4)}, v[216:219], {vr(152+4*t,4)}")
    stamp(a, 11)
    a("s_barrier")
    for t in range(4):
        a(f"ds_write_b128 v235, {vr(136+4*t,4)} offset:{64*t}")
        a(f"ds_write_b128 v235, {vr(152+4*t,4)} offset:{17408+64*t}")
    a("s_waitcnt lgkmcnt(0)")
    a("s_barrier")
    for arr in range(4):
        a(f"ds_read_b128 {vr(40+8*arr,4)}, v234 offset:{arr*17408}")
        a(f"ds_read_b128 {vr(44+8*arr,4)}, v234 offset:{arr*17408+16}")
    q.wait(["x", "b2"], lgkm=0)
    for j in range(4):
        a(f"""
        v_lshlrev_b32 v{72+2*j}, 16, v{32+j}
        v_and_b32 v{73+2*j}, 0xffff0000, v{32+j}
        v_lshlrev_b32 v{80+2*j}, 16, v{28+j}
        v_and_b32 v{81+2*j}, 0xffff0000, v{28+j}
        """)
    for e in range(8):
        a(f"v_add_f32 v{40+e}, v{40+e}, v{56+e}")
    for e in range(8):
        a(f"v_add_f32 v{48+e}, v{48+e}, v{64+e}")
    for e in range(8):
        a(f"v_add_f32 v{40+e}, v{40+e}, v{72+e}")
    for e in range(8):
        a(f"v_mul_f32_e64 v{88+e}, -v{40+e}, s55")
    for e in range(8):
        a(f"v_exp_f32 v{88+e}, v{88+e}")
    for e in range(8):
        a(f"v_add_f32 v{88+e}, 1.0, v{88+e}")
    for e in range(8):
        a(f"v_rcp_f32 v{88+e}, v{88+e}")
    for e in range(8):
        a(f"v_mul_f32 v{40+e}, v{40+e}, v{88+e}")
    for e in range(8):
        a(f"v_fma_f32 v{40+e}, v{40+e}, v{48+e}, v{80+e}")
    for j in range(4):
        a(f"v_cvt_pk_bf16_f32 v{96+j}, v{40+2*j}, v{41+2*j}")
    a("buffer_store_dwordx4 v[96:99], v232, s[64:67], 0 offen")
    stamp(a, 12)
    if PROF:
        a("s_waitcnt vmcnt(0)")
    stamp(a, 13)
    stamp(a, 15, True)
    stamp_flush(a, 1, 16)
    a("K2_END:")
    a("s_endpgm")


def kd(name, nv):
    return f""".p2align 6
.amdhsa_kernel {name}
  .amdhsa_next_free_vgpr {nv}
  .amdhsa_next_free_sgpr 102
  .amdhsa_accum_offset {nv}
  .amdhsa_group_segment_fixed_size 0
  .amdhsa_kernarg_size 96
  .amdhsa_user_sgpr_count 2
  .amdhsa_user_sgpr_kernarg_segment_ptr 1
  .amdhsa_system_sgpr_workgroup_id_x 1
.end_amdhsa_kernel
"""


def main(out):
    a = Asm()
    a.raw(f"""; Two-launch implementation (generated by exp/gen.py; hand-designed assembly).
; @launch kernel=k1_kernel grid=(256,1,1) block=(512,1,1) lds={K1_LDS}
; @launch kernel=k2_kernel grid=(256,1,1) block=(512,1,1) lds={K2_LDS}
.amdgcn_target "amdgcn-amd-amdhsa--gfx950"
.text""")
    gen_k1(a)
    gen_k2(a)
    a.raw('.section .rodata,"a"\n' + kd("k1_kernel", 256) + kd("k2_kernel", 256))
    txt = a.finish()
    open(out, "w").write(txt)
    print("wrote", out, "lines", txt.count("\n"), "pads", a.npad)


if __name__ == "__main__":
    main(sys.argv[1] if len(sys.argv) > 1 else f"cdna_kernels/{NAME}.s")
```

```python
import sys
sys.path.insert(0, "exp")
from asmlib import Asm, VmQ, merge

NAME = "recurrent_scan__linear_kernel_hedgehog__dense_activation_squared_relu__prompt"

WS_H = 0
WS_PQ = 8 << 20
WS_PART = 12 << 20
WS_PARTZ = 13 << 20
WS_KVF = 14 << 20
WS_SIZE = 16 << 20

LOG2E = "0x3fb8aa3b"


def srd(a, d, lo, nbytes):
    a(f"""
    s_mov_b32 s{d}, s{lo}
    s_and_b32 s{d+1}, s{lo+1}, 0xffff
    s_mov_b32 s{d+2}, {nbytes}
    s_mov_b32 s{d+3}, 0x20000
    """)


import os
PROF = os.environ.get("PROF", "") != ""
PF1 = os.environ.get("PF1", "0") == "1"
PFR = os.environ.get("PFR", "1") == "1"
PF2 = os.environ.get("PF2", "1") == "1"
PFW = os.environ.get("PFW", "1") == "1"
STF = os.environ.get("STF", "sc0 sc1")
WS_PROF = 15 << 20


STAMP_SLOT = {k: i for i, k in enumerate(eval(os.environ.get('SLOTS', '[0, 1, 2, 3, 4, 5, 6, 7, 8, 11, 12]')))}


def stamp(a, idx, clk=False):
    if PROF:
        if idx in STAMP_SLOT:
            b = 80 + 2 * STAMP_SLOT[idx]
            a(f"{'s_memtime' if clk else 's_memrealtime'} s[{b}:{b+1}]")


def stamp_flush(a, kern, n, vt=250):
    if not PROF:
        return
    a("s_waitcnt lgkmcnt(0)")
    a(f"""
    s_lshl_b32 s49, s2, 3
    s_add_u32 s49, s49, s46
    s_lshl_b32 s49, s49, 6
    s_add_u32 s49, s49, {WS_PROF + kern*131072}
    v_mov_b32 v{vt}, 0
    s_mov_b64 exec, 1
    """)
    for i in range(n):
        if i not in STAMP_SLOT:
            continue
        a(f"v_mov_b32 v{vt+1}, s{80+2*STAMP_SLOT[i]}")
        a(f"buffer_store_dword v{vt+1}, v{vt}, s[32:35], s49 offen offset:{4*i}")
        a("s_nop 1")
    a("s_mov_b64 exec, -1")


def vr(b, n):
    return f"v[{b}:{b+n-1}]"


def softmax_units(a, units, sl2e):
    def each(f):
        for u in units:
            a(f(u))
    P = lambda u, r: f"v{u['P']+r}"
    T = lambda u, r: f"v{u['T']+r}"
    each(lambda u: f"v_max3_f32 {T(u,8)}, {P(u,0)}, {P(u,1)}, {P(u,2)}")
    each(lambda u: f"v_max3_f32 {T(u,9)}, -{P(u,0)}, -{P(u,1)}, -{P(u,2)}")
    each(lambda u: f"v_max_f32 {T(u,8)}, {T(u,8)}, {P(u,3)}")
    each(lambda u: f"v_max_f32_e64 {T(u,9)}, {T(u,9)}, -{P(u,3)}")

    def allreduce(op):
        each(lambda u: f"v_permlane32_swap_b32 {T(u,8)}, {T(u,9)}")
        each(lambda u: f"{op} {T(u,10)}, {T(u,8)}, {T(u,9)}")
        each(lambda u: f"v_mov_b32 {T(u,11)}, {T(u,10)}")
        each(lambda u: f"v_permlane16_swap_b32 {T(u,10)}, {T(u,11)}")
        each(lambda u: f"{op} {T(u,8)}, {T(u,10)}, {T(u,11)}")
        each(lambda u: f"v_mov_b32 {T(u,9)}, {T(u,8)}")
        each(lambda u: f"v_permlane32_swap_b32 {T(u,8)}, {T(u,9)}")
    allreduce("v_max_f32")
    S = lambda u: u.get('S', sl2e)
    each(lambda u: f"v_mul_f32 {T(u,8)}, {S(u)}, {T(u,8)}")
    each(lambda u: f"v_mul_f32 {T(u,9)}, {S(u)}, {T(u,9)}")
    for r in range(4):
        each(lambda u: f"v_fma_f32 {T(u,r)}, {P(u,r)}, {S(u)}, -{T(u,8)}")
        each(lambda u: f"v_fma_f32 {T(u,4+r)}, -{P(u,r)}, {S(u)}, -{T(u,9)}")
    for r in range(8):
        each(lambda u: f"v_exp_f32 {T(u,r)}, {T(u,r)}")
    each(lambda u: f"v_add_f32 {T(u,8)}, {T(u,0)}, {T(u,1)}")
    each(lambda u: f"v_add_f32 {T(u,9)}, {T(u,4)}, {T(u,5)}")
    each(lambda u: f"v_add_f32 {T(u,10)}, {T(u,2)}, {T(u,3)}")
    each(lambda u: f"v_add_f32 {T(u,11)}, {T(u,6)}, {T(u,7)}")
    each(lambda u: f"v_add_f32 {T(u,8)}, {T(u,8)}, {T(u,10)}")
    each(lambda u: f"v_add_f32 {T(u,9)}, {T(u,9)}, {T(u,11)}")
    allreduce("v_add_f32")
    each(lambda u: f"v_rcp_f32 {T(u,8)}, {T(u,8)}")
    each(lambda u: f"v_rcp_f32 {T(u,9)}, {T(u,9)}")
    for r in range(4):
        each(lambda u: f"v_mul_f32 {T(u,r)}, {T(u,r)}, {T(u,8)}")
        each(lambda u: f"v_mul_f32 {T(u,4+r)}, {T(u,4+r)}, {T(u,9)}")
    for r in range(4):
        each(lambda u: f"v_cvt_pk_bf16_f32 v{u['O']+r}, {T(u,2*r)}, {T(u,2*r+1)}")


K1_NS = 3
K1_A, K1_Q, K1_H = 0, 49152, 98304
K1_WPHI = 147456
K1_RS = 148480
K1_CS = K1_RS + 1024
K1_LDS = K1_CS + 4096


def gen_k1(a):
    a.raw(".globl k1_kernel\n.p2align 8\n.type k1_kernel,@function\nk1_kernel:")
    a(f"""
    s_cmp_ge_u32 s2, 256
    s_cbranch_scc1 K1_END
    s_load_dwordx4 s[4:7], s[0:1], 0
    s_load_dwordx4 s[8:11], s[0:1], 16
    s_load_dwordx4 s[12:15], s[0:1], 40
    s_load_dwordx2 s[16:17], s[0:1], 88
    s_load_dwordx2 s[18:19], s[0:1], 56
    """)
    stamp(a, 0)
    stamp(a, 14, True)
    a(f"""
    v_lshrrev_b32 v4, 6, v0
    v_and_b32 v1, 63, v0
    v_and_b32 v2, 15, v0
    v_bfe_u32 v3, v0, 4, 2
    v_readfirstlane_b32 s46, v4
    s_and_b32 s50, s2, 7             ; xcd
    s_lshr_b32 s51, s2, 3            ; j
    s_and_b32 s52, s50, 1
    s_lshl_b32 s52, s52, 3
    s_and_b32 s53, s51, 7
    s_add_u32 s44, s52, s53          ; rb
    s_lshr_b32 s52, s50, 1
    s_lshl_b32 s52, s52, 2
    s_lshr_b32 s53, s51, 3
    s_add_u32 s45, s52, s53          ; cb
    s_and_b32 s43, s45, 1            ; par
    s_and_b32 s47, s46, 3            ; rg
    s_lshr_b32 s48, s46, 2           ; role
    s_mov_b32 s55, {LOG2E}
    v_lshlrev_b32 v37, 4, v1         ; lane*16
    s_lshl_b32 s54, s46, 11
    """)
    a(f"""
    s_lshl_b32 s50, s44, 7
    s_lshl_b32 s51, s46, 4
    s_add_u32 s50, s50, s51
    v_lshrrev_b32 v4, 3, v1
    v_add_u32 v4, s50, v4
    v_lshlrev_b32 v4, 10, v4
    v_and_b32 v5, 7, v1
    v_xor_b32 v6, v5, v3
    v_lshl_add_u32 v10, v6, 4, v4
    v_xor_b32 v6, 4, v6
    v_lshl_add_u32 v11, v6, 4, v4
    v_add_u32 v11, 0x2000, v11
    """)
    a(f"""
    s_and_b32 s50, s46, 1
    s_lshl_b32 s50, s50, 2
    v_or_b32 v4, s50, v3
    v_lshlrev_b32 v4, 1, v4
    v_xor_b32 v4, v4, v2             ; u
    s_lshl_b32 s51, s46, 3
    v_add_u32 v5, s51, v3            ; row (e=0)
    v_lshrrev_b32 v6, 2, v4
    v_min_u32 v6, 2, v6              ; seg
    v_and_b32 v7, 3, v4
    v_lshlrev_b32 v6, 10, v6
    v_lshl_add_u32 v6, v7, 4, v6
    v_mul_u32_u24 v7, 3072, v5
    s_lshl_b32 s51, s45, 6
    v_add3_u32 v12, v6, v7, s51
    v_add_u32 v13, {4*3072}, v12
    v_min_u32 v6, 13, v4
    s_lshl_b32 s50, s43, 1
    v_add_u32 v6, s50, v6
    v_subrev_u32 v7, 14, v6
    v_min_u32 v6, v6, v7
    v_mul_u32_u24 v7, 3584, v5
    s_mul_i32 s51, s45, 224
    v_lshl_add_u32 v6, v6, 4, v7
    v_add_u32 v14, s51, v6
    v_add_u32 v15, {4*3584}, v14
    """)
    if PFR:
        a(f"""
        s_and_b32 s50, s2, 7
        s_lshr_b32 s51, s2, 3            ; j
        s_and_b32 s52, s50, 1
        s_lshl_b32 s52, s52, 10
        s_lshl_b32 s53, s51, 5
        s_add_u32 s52, s52, s53
        s_lshr_b32 s53, s47, 1
        s_lshl_b32 s53, s53, 4
        s_add_u32 s52, s52, s53
        v_add_u32 v4, s52, v2
        v_lshlrev_b32 v4, 10, v4         ; x variant
        s_lshr_b32 s50, s50, 1           ; xcd>>1
        v_lshrrev_b32 v5, 3, v2
        s_lshl_b32 s52, s51, 1
        v_add_u32 v5, s52, v5
        v_and_b32 v6, 7, v2
        v_min_u32 v7, 5, v6
        v_lshrrev_b32 v8, 1, v7
        v_and_b32 v7, 1, v7
        v_lshlrev_b32 v8, 10, v8
        v_lshl_add_u32 v8, v7, 7, v8
        v_mul_u32_u24 v7, 3072, v5
        s_lshl_b32 s52, s50, 8
        v_add3_u32 v7, v7, v8, s52
        v_min_u32 v6, 6, v6
        v_mul_u32_u24 v8, 3584, v5
        v_lshl_add_u32 v8, v6, 7, v8
        s_mul_i32 s52, s50, 896
        v_add_u32 v8, s52, v8            ; w1 variant
        s_cmp_eq_u32 s47, 1
        s_cselect_b64 s[52:53], -1, 0
        s_cmp_eq_u32 s47, 2
        s_cselect_b64 s[50:51], -1, 0
        v_cndmask_b32 v4, v4, v7, s[52:53]
        v_cndmask_b32 v254, v4, v8, s[50:51]
        s_movk_i32 s62, 128
        s_cmp_eq_u32 s47, 1
        s_cselect_b32 s62, {64*3072}, s62
        s_cmp_eq_u32 s47, 2
        s_cselect_b32 s62, {64*3584}, s62
        s_mul_i32 s63, s62, s48
        """)
    a("s_waitcnt lgkmcnt(0)")
    srd(a, 20, 4, 2048 * 1024)
    srd(a, 24, 6, 512 * 3072)
    srd(a, 28, 12, 512 * 3584)
    q = VmQ(a)
    if PFR:
        a(f"""
        s_cmp_eq_u32 s47, 1
        s_cselect_b32 s76, s24, s20
        s_cselect_b32 s77, s25, s21
        s_cselect_b32 s78, s26, s22
        s_cmp_eq_u32 s47, 2
        s_cselect_b32 s76, s28, s76
        s_cselect_b32 s77, s29, s77
        s_cselect_b32 s78, s30, s78
        s_mov_b32 s79, 0x20000
        buffer_load_dword v255, v254, s[76:79], s63 offen
        """)
        q.issue("pf")

    def dma(s):
        slot = s % K1_NS
        o = slot * 16384
        return [
            f"s_movk_i32 s57, {s*128}\ns_add_u32 m0, s54, {K1_A + o}\nbuffer_load_dwordx4 v10, s[20:23], s57 offen lds",
            f"s_add_u32 m0, s54, {K1_A + o + 1024}\nbuffer_load_dwordx4 v11, s[20:23], s57 offen lds",
            f"s_mov_b32 s58, {s*64*3072}\ns_add_u32 m0, s54, {K1_Q + o}\nbuffer_load_dwordx4 v12, s[24:27], s58 offen lds",
            f"s_add_u32 m0, s54, {K1_Q + o + 1024}\nbuffer_load_dwordx4 v13, s[24:27], s58 offen lds",
            f"s_mov_b32 s59, {s*64*3584}\ns_add_u32 m0, s54, {K1_H + o}\nbuffer_load_dwordx4 v14, s[28:31], s59 offen lds",
            f"s_add_u32 m0, s54, {K1_H + o + 1024}\nbuffer_load_dwordx4 v15, s[28:31], s59 offen lds",
        ]

    for s in range(2):
        for d in dma(s):
            a(d)
            q.issue(("st", s))
        if s == 0 and os.environ.get("PBAR", "1") == "1":
            a("s_barrier")
    srd(a, 32, 16, WS_SIZE)
    srd(a, 36, 14, 3584)
    srd(a, 64, 8, 16384)
    if PFW:
        srd(a, 68, 18, 1792 * 1024)
        srd(a, 72, 10, 512 * 1024)
    a(f"""
    s_mov_b32 m0, {K1_WPHI}
    s_lshl_b32 s51, s45, 10
    buffer_load_dwordx4 v37, s[64:67], s51 offen lds
    s_lshl_b32 s50, s2, 8
    s_add_u32 s50, s50, {WS_KVF}
    v_lshlrev_b32 v4, 2, v1
    v_mov_b32 v5, -1
    buffer_store_dword v5, v4, s[32:35], s50 offen
    """)
    q.issue("wphi")
    q.issue("sent")
    stamp(a, 1)
    FS = [64, 100]
    ACC = 136
    RSUM, RSQ, CSA = 192, 196, 200
    ONES = 228
    a(f"""
    v_lshrrev_b32 v4, 1, v2
    v_xor_b32 v4, v4, v3
    v_lshlrev_b32 v4, 4, v4
    s_lshl_b32 s50, s47, 5
    s_lshl_b32 s51, s48, 4
    s_add_u32 s51, s51, s50
    v_add_u32 v5, s51, v2
    v_lshl_add_u32 v16, v5, 7, v4
    v_xor_b32 v17, 64, v16
    v_xor_b32 v18, 0x800, v16
    v_xor_b32 v19, 0x800, v17
    v_lshlrev_b32 v4, 3, v5
    v_add_u32 v33, {K1_RS}, v4
    v_xor_b32 v35, 0x80, v33
    s_lshl_b32 s50, s47, 6
    s_lshl_b32 s51, s48, 9
    s_add_u32 s51, s51, {K1_CS}
    s_add_u32 s50, s50, s51
    v_lshlrev_b32 v4, 4, v3
    v_add_u32 v34, s50, v4
    v_add_u32 v36, s51, v4
    v_lshrrev_b32 v4, 2, v2
    v_and_b32 v5, 1, v3
    v_lshl_or_b32 v5, v5, 2, v4
    v_lshlrev_b32 v5, 5, v5
    v_lshl_add_u32 v6, v3, 3, v4     ; row = 8g + (i>>2)
    v_lshl_add_u32 v5, v6, 8, v5
    v_and_b32 v6, 3, v2
    v_lshl_add_u32 v5, v6, 3, v5
    s_mul_i32 s50, s48, {K1_H - K1_Q}
    s_add_u32 s50, s50, {K1_Q}
    v_add_u32 v232, s50, v5
    """)
    for t in range(1, 7):
        a(f"v_xor_b32 v{232+t}, {t << 5}, v232")
    for r in range(ACC, ONES):
        a(f"v_mov_b32 v{r}, 0")
    for r in range(4):
        a(f"v_mov_b32 v{ONES+r}, 0x3f803f80")
    a(f"""
    v_lshl_add_u32 v8, v3, 2, 0
    v_lshrrev_b32 v9, 2, v2
    v_add_u32 v8, v8, v9
    v_lshlrev_b32 v8, 5, v8
    v_and_b32 v9, 3, v2
    v_lshl_add_u32 v8, v9, 3, v8
    v_add_u32 v38, {K1_WPHI}, v8
    s_lshl_b32 s42, s44, 3
    s_lshl_b32 s50, s47, 1
    s_add_u32 s42, s42, s50
    """)
    a("s_cmp_eq_u32 s48, 1")
    a("s_cbranch_scc1 K1_HPATH")

    def k1_pf(sfx):
        return (f"""
        s_and_b32 s50, s2, 7
        s_lshr_b32 s51, s2, 3            ; j
        s_cmp_ge_u32 s46, 4
        s_cbranch_scc1 K1_PF_W{sfx}
        s_and_b32 s40, s50, 1
        s_lshl_b32 s40, s40, 20
        s_lshl_b32 s41, s51, 15
        s_add_u32 s40, s40, s41
        s_lshl_b32 s41, s46, 13
        s_add_u32 s40, s40, s41
        v_lshlrev_b32 v4, 7, v1
        buffer_load_dword v255, v4, s[20:23], s40 offen
        s_branch K1_PF_E{sfx}
        K1_PF_W{sfx}:
        s_and_b32 s41, s46, 1
        s_lshl_b32 s41, s41, 3
        s_lshl_b32 s40, s51, 4
        s_add_u32 s40, s40, s41
        v_lshrrev_b32 v4, 3, v1
        v_add_u32 v4, s40, v4            ; row
        v_and_b32 v5, 7, v1
        s_lshr_b32 s50, s50, 1           ; xcd>>1
        s_cmp_ge_u32 s46, 6
        s_cbranch_scc1 K1_PF_H{sfx}
        v_min_u32 v5, 5, v5
        v_lshrrev_b32 v6, 1, v5
        v_and_b32 v5, 1, v5
        v_lshlrev_b32 v6, 10, v6
        v_lshl_add_u32 v6, v5, 7, v6
        s_movk_i32 s41, 3072
        v_mul_lo_u32 v4, v4, s41
        v_add_u32 v4, v4, v6
        s_lshl_b32 s50, s50, 8
        buffer_load_dword v255, v4, s[24:27], s50 offen
        s_branch K1_PF_E{sfx}
        K1_PF_H{sfx}:
        s_movk_i32 s41, 3584
        v_mul_lo_u32 v4, v4, s41
        v_lshl_add_u32 v4, v5, 7, v4
        s_mul_i32 s50, s50, 896
        buffer_load_dword v255, v4, s[28:31], s50 offen
        K1_PF_E{sfx}:
        """)

    PKI, VI, QXI = 0, 16384, 24576

    def path(H, q):
        nt = 7 if H else 6
        if H:
            a(f"""
            s_mul_i32 s50, s45, 224
            s_lshl_b32 s51, s43, 5
            s_add_u32 s51, s51, s50
            v_lshlrev_b32 v4, 3, v3
            v_add_u32 v5, s51, v4
            s_mul_i32 s51, s43, 192
            s_sub_u32 s51, 192, s51
            s_add_u32 s51, s51, s50
            v_add_u32 v6, s51, v4
            """)
            for t in range(6):
                a(f"buffer_load_dwordx2 {vr(40+2*t,2)}, v5, s[36:39], 0 offen offset:{32*t}")
                q.issue("bias")
            a(f"buffer_load_dwordx2 {vr(52,2)}, v6, s[36:39], 0 offen")
            q.issue("bias")

        def reads(s, kk):
            o = (s % K1_NS) * 16384
            f = FS[kk]
            r = []
            for mi in range(2):
                r.append(f"ds_read_b128 {vr(f+4*mi,4)}, v{16+kk+2*mi} offset:{o}")
            for t in range(nt):
                r.append(f"ds_read_b64_tr_b16 {vr(f+8+4*t,2)}, v{232+t} offset:{o + kk*8192}")
                r.append(f"ds_read_b64_tr_b16 {vr(f+8+4*t+2,2)}, v{232+t} offset:{o + kk*8192 + 1024}")
            return r

        def compute(s, kk, other):
            f = FS[kk]
            mf = []
            for t in range(nt):
                for mi in range(2):
                    c = ACC + 8 * t + 4 * mi
                    mf.append(f"v_mfma_f32_16x16x32_bf16 {vr(c,4)}, {vr(f+8+4*t,4)}, {vr(f+4*mi,4)}, {vr(c,4)}")
            st = [f"v_mfma_f32_16x16x32_bf16 {vr(RSUM,4)}, {vr(ONES,4)}, {vr(f,4)}, {vr(RSUM,4)}",
                  f"v_mfma_f32_16x16x32_bf16 {vr(RSQ,4)}, {vr(f,4)}, {vr(f,4)}, {vr(RSQ,4)}"]
            if (s, kk) == (7, 1):
                for x in st + mf[:6]:
                    a(x)
                a(f"""
                s_mov_b64 exec, s[60:61]
                ds_write_b128 v34, {vr(CSA,4)}
                ds_write_b128 v34, {vr(CSA+4,4)} offset:256
                s_mov_b64 exec, -1
                """)
                a(mf[6]); a(mf[7])
                a(f"""
                v_cndmask_b32 v7, v{RSQ}, v{RSQ+1}, s[40:41]
                v_cndmask_b32 v7, v7, v{RSQ+2}, s[50:51]
                v_cndmask_b32 v7, v7, v{RSQ+3}, s[56:57]
                v_mov_b32 v6, v{RSUM}
                s_mov_b64 exec, s[58:59]
                ds_write_b64 v33, v[6:7]
                s_mov_b64 exec, -1
                ds_read_b64_tr_b16 v[56:57], v38
                ds_read_b64_tr_b16 v[58:59], v38 offset:512
                s_nop 1
                """)
                for x in mf[8:]:
                    a(x)
                return
            mf += st
            for x in merge(mf, other, ratio=int(os.environ.get("RATIO", "2"))):
                a(x)

        def colsum(s):
            lab = f"K1_CS_{int(H)}_{s}"
            for v in range(4):
                if v < 3:
                    a(f"s_cmp_lg_u32 s47, {v}")
                    a(f"s_cbranch_scc1 {lab}_{v+1}")
                for kk in range(2):
                    f = FS[kk]
                    for t in (v, v + 4):
                        if t < nt:
                            c = CSA + 4 * (t >> 2)
                            a(f"v_mfma_f32_16x16x32_bf16 {vr(c,4)}, {vr(f+8+4*t,4)}, {vr(ONES,4)}, {vr(c,4)}")
                if v < 3:
                    a(f"s_branch {lab}_e")
                    a(f"{lab}_{v+1}:")
            a(f"{lab}_e:")

        def k1_pfw():
            lab = f"K1_PW_{int(H)}"
            return [f"""
                s_lshr_b32 s51, s2, 3
                v_lshlrev_b32 v4, 7, v1
                s_mul_i32 s40, s51, 57344
                s_lshl_b32 s41, s46, 13
                s_add_u32 s40, s40, s41
                s_lshl_b32 s41, s51, 14
                s_cmp_eq_u32 s46, 7
                s_cbranch_scc1 {lab}_o
                buffer_load_dword v255, v4, s[68:71], s40 offen
                s_branch {lab}_e
                {lab}_o:
                buffer_load_dword v255, v4, s[72:75], s41 offen
                {lab}_e:
                """, f"""
                s_add_u32 s41, s41, 8192
                buffer_load_dword v255, v4, s[72:75], s41 offen
                """]

        def touch(st):
            return f"s_mul_i32 s63, s62, {st}\nbuffer_load_dword v255, v254, s[76:79], s63 offen"
        PFD = int(os.environ.get("PFD", "4"))
        if PFR and not H:
            for st in range(2, PFD):
                a(touch(st))
                q.issue("pf")
        q.wait([("st", 0)])
        stamp(a, 2)
        a("s_barrier")
        for r in reads(0, 0):
            a(r)
        for s in range(8):
            if s in (1, 2, 4, 6) and not os.environ.get('SLOTS'):
                stamp(a, 3 + (1, 2, 4, 6).index(s))
            a("s_waitcnt lgkmcnt(0)")
            other = reads(s, 1)
            if s == 0:
                for d in dma(2):
                    other.append(d)
                    q.issue(("st", 2))
            if PFR and not H and s + PFD < 8:
                other.append(touch(s + PFD))
                q.issue("pf")
            if PF1 and s == int(os.environ.get("PF1S", "0")):
                other.append(k1_pf("h" if H else "q"))
                q.issue("pf")
            if PFW and s == int(os.environ.get("PFWS", "6")):
                for d in k1_pfw():
                    other.append(d)
                    q.issue("pfw")
            compute(s, 0, other)
            q.wait([("st", s + 1)] if s + 1 < 8 else [], lgkm=0)
            a("s_barrier")
            if s == 7:
                a(f"""
                v_and_b32 v4, 3, v2
                v_lshrrev_b32 v5, 2, v2
                v_cmp_eq_u32 s[40:41], 1, v4
                v_cmp_eq_u32 s[50:51], 2, v4
                v_cmp_eq_u32 s[56:57], 3, v4
                v_cmp_eq_u32 s[58:59], v5, v3
                v_cmp_eq_u32 s[60:61], 0, v2
                """)
            colsum(s)
            other = []
            if s + 1 < 8:
                other += reads(s + 1, 0)
            if s + K1_NS < 8:
                for d in dma(s + K1_NS):
                    other.append(d)
                    q.issue(("st", s + K1_NS))
            compute(s, 1, other)
        stamp(a, 7)
        a("""
        s_waitcnt lgkmcnt(0)
        s_barrier
        """)
        stamp(a, 8)
        CS = 64
        a("""
        ds_read_b64 v[4:5], v33
        ds_read_b64 v[6:7], v35
        """)
        for t in range(nt):
            a(f"ds_read_b128 {vr(CS+4*t,4)}, v36 offset:{64*t}")
        a(f"s_waitcnt lgkmcnt({nt})")
        a("""
        v_mul_f32 v4, 0x3b000000, v4
        v_mul_f32 v5, 0x3b000000, v5
        v_mul_f32 v6, 0x3b000000, v6
        v_mul_f32 v7, 0x3b000000, v7
        v_fma_f32 v5, -v4, v4, v5
        v_fma_f32 v7, -v6, v6, v7
        v_max_f32 v5, 0, v5
        v_max_f32 v7, 0, v7
        v_add_f32 v5, 0x3727c5ac, v5
        v_add_f32 v7, 0x3727c5ac, v7
        v_rsq_f32 v60, v5
        v_rsq_f32 v61, v7
        v_sub_f32 v20, 0, v4
        v_sub_f32 v21, 0, v6
        v_mul_f32 v62, v20, v60
        v_mul_f32 v63, v21, v61
        v_mul_f32 v22, s55, v60
        v_mul_f32 v23, s55, v61
        s_waitcnt lgkmcnt(0)
        """)
        a(f"""
        s_lshl_b32 s50, s42, 5
        s_lshl_b32 s51, s45, 1
        s_add_u32 s50, s50, s51
        s_lshl_b32 s50, s50, 10
        s_add_u32 s60, s50, {WS_PQ}
        s_add_u32 s61, s60, 32768
        s_lshl_b32 s50, s47, 10
        s_add_u32 s50, s50, {QXI}
        v_lshlrev_b32 v39, 3, v1
        v_add_u32 v39, s50, v39
        """)
        if H:
            q.wait(["bias"])
            BU = 100
            for t in range(7):
                a(f"""
                v_lshlrev_b32 v{BU+4*t}, 16, v{40+2*t}
                v_and_b32 v{BU+4*t+1}, 0xffff0000, v{40+2*t}
                v_lshlrev_b32 v{BU+4*t+2}, 16, v{41+2*t}
                v_and_b32 v{BU+4*t+3}, 0xffff0000, v{41+2*t}
                """)
            a(f"""
            s_lshr_b32 s50, s45, 1
            s_mul_i32 s50, s50, 7
            s_lshl_b32 s51, s43, 2
            s_add_u32 s51, s51, s50
            s_add_u32 s50, s50, 3
            s_lshl_b32 s51, s51, 10
            s_lshl_b32 s50, s50, 10
            s_lshl_b32 s52, s43, 3
            s_add_u32 s50, s50, s52
            s_mul_i32 s53, s42, {56*1024}
            s_add_u32 s52, s53, {56*1024}
            s_add_u32 s56, s51, s52
            s_add_u32 s57, s51, s53          ; mi=1
            s_add_u32 s58, s50, s52
            s_add_u32 s59, s50, s53
            """)
            OUT = 192

            def hepi(mi):
                for t in range(7):
                    c = ACC + 8 * t + 4 * mi
                    tmp = 128 + 4 * (t & 1)
                    for r in range(4):
                        a(f"v_fma_f32 v{tmp+r}, v{62+mi}, v{CS+4*t+r}, v{BU+4*t+r}")
                    for r in range(4):
                        a(f"v_fma_f32 v{c+r}, v{c+r}, v{60+mi}, v{tmp+r}")
                    for r in range(4):
                        a(f"v_max_f32 v{c+r}, 0, v{c+r}")
                    for r in range(4):
                        a(f"v_mul_f32 v{c+r}, v{c+r}, v{c+r}")
                    o = OUT + 16 * mi + 2 * t
                    a(f"v_cvt_pk_bf16_f32 v{o}, v{c}, v{c+1}")
                    a(f"v_cvt_pk_bf16_f32 v{o+1}, v{c+2}, v{c+3}")
                    if t in (1, 3, 5):
                        a(f"buffer_store_dwordx4 {vr(o-2,4)}, v37, s[32:35], s{56+mi} offen offset:{(t>>1)*1024} {STF}")
                    if t == 6:
                        a(f"buffer_store_dwordx2 {vr(o,2)}, v37, s[32:35], s{58+mi} offen {STF}")
            hepi(0)
            a("s_barrier")
            a("""
            ds_read_b64 v[24:25], v39
            ds_read_b64 v[26:27], v39 offset:512
            """)
            hepi(1)
            a("s_waitcnt lgkmcnt(0)")
            units = []
            for hh in range(2):
                u = dict(P=136 + 4 * hh, T=64 + 12 * hh, O=144 + 4 * hh, hh=hh, S="v22")
                a(f"v_mfma_f32_16x16x16_bf16 {vr(u['P'],4)}, {vr(56+2*hh,2)}, {vr(24+2*hh,2)}, 0")
                units.append(u)
            a(f"""
            s_lshr_b32 s50, s47, 1
            s_and_b32 s51, s47, 1
            v_lshrrev_b32 v4, 2, v2
            v_lshl_add_u32 v4, v3, 3, v4     ; row = 8g + (i>>2)
            v_and_b32 v5, 3, v2
            v_lshlrev_b32 v5, 3, v5
            v_lshl_add_u32 v8, v4, 6, v5
            s_lshl_b32 s52, s50, 13
            s_lshl_b32 s53, s51, 5
            s_add_u32 s52, s52, s53
            s_add_u32 s52, s52, {PKI}
            v_add_u32 v8, s52, v8
            v_lshl_add_u32 v9, v4, 5, v5
            s_lshl_b32 s52, s50, 12
            s_add_u32 s52, s52, {VI}
            v_add_u32 v9, s52, v9
            s_lshl_b32 s52, s44, 5
            s_lshl_b32 s53, s45, 1
            s_add_u32 s53, s53, s50          ; head
            s_add_u32 s52, s52, s53
            s_lshl_b32 s51, s51, 4           ; sign*16
            s_lshl_b32 s53, s52, 7
            s_add_u32 s53, s53, s51
            s_add_u32 s53, s53, {WS_PARTZ}
            s_lshl_b32 s52, s52, 11
            s_add_u32 s52, s52, s51
            s_add_u32 s52, s52, {WS_PART}
            v_lshlrev_b32 v4, 5, v1
            v_lshlrev_b32 v5, 5, v3
            v_cmp_eq_u32 s[62:63], 0, v2
            """)
            softmax_units(a, units, "s55")
            for u in units:
                a(f"buffer_store_dwordx4 {vr(u['O'],4)}, v37, s[32:35], s61 offen offset:{u['hh']*1024} {STF}")
            stamp(a, 9)
            a("s_barrier")
            stamp(a, 10)
            for kk in range(4):
                fa, fb = 152 + 8 * kk, 156 + 8 * kk
                a(f"""
                ds_read_b64_tr_b16 {vr(fa,2)}, v8 offset:{kk*2048}
                ds_read_b64_tr_b16 {vr(fa+2,2)}, v8 offset:{kk*2048+256}
                ds_read_b64_tr_b16 {vr(fb,2)}, v9 offset:{kk*1024}
                ds_read_b64_tr_b16 {vr(fb+2,2)}, v9 offset:{kk*1024+128}
                """)
            a("s_waitcnt lgkmcnt(0)")
            for kk in range(4):
                fa, fb = 152 + 8 * kk, 156 + 8 * kk
                c0 = "0" if kk == 0 else "v[44:47]"
                c1 = "0" if kk == 0 else "v[48:51]"
                a(f"v_mfma_f32_16x16x32_bf16 v[44:47], {vr(fa,4)}, {vr(fb,4)}, {c0}")
                a(f"v_mfma_f32_16x16x32_bf16 v[48:51], {vr(fa,4)}, {vr(ONES,4)}, {c1}")
            a(f"""
            buffer_store_dwordx4 v[44:47], v4, s[32:35], s52 offen {STF}
            s_mov_b64 exec, s[62:63]
            buffer_store_dwordx4 v[48:51], v5, s[32:35], s53 offen {STF}
            s_mov_b64 exec, -1
            """)
        else:
            PK2 = 192

            def fold(t, mi, scaled):
                c = ACC + 8 * t + 4 * mi
                for r in range(4):
                    a(f"v_fma_f32 v{c+r}, v{20+mi}, v{CS+4*t+r}, v{c+r}")
                if scaled:
                    for r in range(4):
                        a(f"v_mul_f32 v{c+r}, v{c+r}, v{60+mi}")
                o = PK2 + (t * 2 + mi) * 2
                a(f"v_cvt_pk_bf16_f32 v{o}, v{c}, v{c+1}")
                a(f"v_cvt_pk_bf16_f32 v{o+1}, v{c+2}, v{c+3}")
            a(f"""
            s_lshl_b32 s50, s47, 5
            v_add_u32 v4, s50, v2
            v_lshlrev_b32 v5, 3, v3
            v_lshl_add_u32 v6, v4, 6, v5
            v_lshl_add_u32 v7, v4, 5, v5     ; V write: m*32 + 8g
            """)
            for hh in range(2):
                fold(hh, 1, False)
                a(f"ds_write_b64 v39, {vr(PK2 + (hh*2+1)*2, 2)} offset:{hh*512}")
            for t in (2, 3):
                for mi in range(2):
                    fold(t, mi, False)
            units = []
            for hh in range(2):
                for mi in range(2):
                    k = hh * 2 + mi
                    u = dict(P=ACC + 8 * (2 + hh) + 4 * mi, T=88 + 12 * k, O=216 + 4 * k, hh=hh, mi=mi, S=f"v{22+mi}")
                    o = PK2 + ((2 + hh) * 2 + mi) * 2
                    a(f"v_mfma_f32_16x16x16_bf16 {vr(u['P'],4)}, {vr(56+2*hh,2)}, {vr(o,2)}, 0")
                    units.append(u)
            for t in (4, 5):
                for mi in range(2):
                    fold(t, mi, True)
            for hh in range(2):
                for mi in range(2):
                    o = PK2 + ((4 + hh) * 2 + mi) * 2
                    a(f"ds_write_b64 v7, {vr(o,2)} offset:{VI + hh*4096 + mi*512}")
            a("s_waitcnt lgkmcnt(4)")
            a("s_barrier")
            softmax_units(a, units, "s55")
            for u in units:
                base = PKI + u['hh'] * 8192 + u['mi'] * 1024
                a(f"ds_write_b64 v6, {vr(u['O'],2)} offset:{base}")
                a(f"ds_write_b64 v6, {vr(u['O']+2,2)} offset:{base+32}")
            units = []
            for hh in range(2):
                fold(hh, 0, False)
            for hh in range(2):
                u = dict(P=ACC + 8 * hh, T=88 + 12 * hh, O=168 + 4 * hh, hh=hh, S="v22")
                a(f"v_mfma_f32_16x16x16_bf16 {vr(u['P'],4)}, {vr(56+2*hh,2)}, {vr(PK2 + hh*4,2)}, 0")
                units.append(u)
            a("s_waitcnt lgkmcnt(0)")
            stamp(a, 9)
            a("s_barrier")
            stamp(a, 10)
            softmax_units(a, units, "s55")
            for u in units:
                a(f"buffer_store_dwordx4 {vr(u['O'],4)}, v37, s[32:35], s60 offen offset:{u['hh']*1024} {STF}")
        stamp(a, 11)
        if PROF:
            a("s_waitcnt vmcnt(0)")
        stamp(a, 12)
        stamp(a, 15, True)
        stamp_flush(a, 0, 16)
        a("s_branch K1_END")

    q2 = q.copy()
    path(False, q)
    a("K1_HPATH:")
    a("s_nop 4")
    path(True, q2)
    a("K1_END:")
    a("s_endpgm")


K2_NS = 11
K2_KV = K2_NS * 8192
K2_LDS = K2_KV + 34816
K2_NA = 12
K2_NST = 36
KV_TRIES = int(os.environ.get('KV_TRIES', '200'))
P_KVW = int(os.environ.get('ATT0', '20')) - 6
P_KVL = P_KVW - 7


def gen_k2(a):
    a.raw(".globl k2_kernel\n.p2align 8\n.type k2_kernel,@function\nk2_kernel:")
    a(f"""
    s_cmp_ge_u32 s2, 256
    s_cbranch_scc1 K2_END
    s_load_dwordx2 s[4:5], s[0:1], 0
    s_load_dwordx2 s[6:7], s[0:1], 24
    s_load_dwordx4 s[8:11], s[0:1], 56
    s_load_dwordx2 s[12:13], s[0:1], 72
    s_load_dwordx2 s[16:17], s[0:1], 88
    """)
    stamp(a, 0)
    stamp(a, 14, True)
    a(f"""
    v_lshrrev_b32 v4, 6, v0
    v_and_b32 v1, 63, v0
    v_and_b32 v2, 15, v0
    v_bfe_u32 v3, v0, 4, 2
    v_readfirstlane_b32 s46, v4
    s_and_b32 s50, s2, 7             ; xcd
    s_lshr_b32 s51, s2, 3
    s_lshl_b32 s52, s50, 2
    s_and_b32 s53, s51, 3            ; mb_l
    s_add_u32 s60, s52, s53          ; mb
    s_lshr_b32 s61, s51, 2           ; nb
    s_mul_i32 s52, s53, 7
    s_mul_i32 s56, s61, 11
    s_add_u32 s52, s52, s56
    s_add_u32 s52, s52, s50          ; <= 21+77+7 = 105
    s_mul_i32 s56, s52, 147
    s_lshr_b32 s56, s56, 12
    s_mul_i32 s56, s56, 28
    s_sub_u32 s42, s52, s56
    s_and_b32 s42, s42, {int(os.environ.get("ROT2", "0"))}
    s_lshl_b32 s52, s53, 1
    s_add_u32 s52, s52, s61
    s_add_u32 s52, s52, s50
    s_and_b32 s43, s52, {int(os.environ.get("ROT3", "0"))}
    s_and_b32 s47, s46, 3            ; mt_l
    s_lshr_b32 s48, s46, 2           ; kh
    s_lshl_b32 s54, s46, 10          ; w*1024
    s_mov_b32 s55, {LOG2E}
    s_lshl_b32 s62, s60, 2
    s_add_u32 s62, s62, s47          ; mt
    s_movk_i32 s58, 4096
    """)
    a(f"""
    v_lshrrev_b32 v4, 3, v1
    s_lshl_b32 s50, s46, 3
    v_add_u32 v4, s50, v4
    v_and_b32 v5, 7, v1
    v_lshlrev_b32 v6, 1, v3
    v_xor_b32 v5, v5, v6
    v_lshlrev_b32 v5, 4, v5
    v_lshl_add_u32 v4, v4, 10, v5
    s_lshl_b32 s50, s61, 7
    v_add_u32 v10, s50, v4           ; vOffB
    v_lshlrev_b32 v17, 4, v1         ; lane*16
    s_mul_i32 s50, s62, 56
    s_add_u32 s50, s50, s48
    s_lshl_b32 s50, s50, 10
    v_add_u32 v11, s50, v17          ; vOffA (h)
    s_lshl_b32 s50, s62, 5
    s_lshl_b32 s51, s48, 1
    s_add_u32 s50, s50, s51
    s_lshl_b32 s50, s50, 10
    s_add_u32 s50, s50, {WS_PQ}
    v_add_u32 v12, s50, v17          ; vOffP
    """)
    a(f"""
    v_lshrrev_b32 v4, 2, v2
    v_lshl_add_u32 v4, v3, 2, v4
    s_lshl_b32 s50, s48, 5
    v_add_u32 v4, s50, v4
    v_lshrrev_b32 v5, 3, v2
    v_lshl_add_u32 v5, v3, 1, v5
    v_and_b32 v5, 3, v5
    v_lshlrev_b32 v5, 5, v5
    v_lshl_add_u32 v4, v4, 7, v5
    v_and_b32 v5, 3, v2
    v_lshl_add_u32 v13, v5, 3, v4
    v_xor_b32 v14, 32, v13
    v_xor_b32 v15, 64, v13
    v_xor_b32 v16, 96, v13
    v_add_u32 v236, 0x10000, v13
    v_add_u32 v237, 0x10000, v14
    v_add_u32 v238, 0x10000, v15
    v_add_u32 v239, 0x10000, v16
    """)
    a(f"""
    s_lshl_b32 s50, s2, 3
    s_add_u32 s50, s50, s46          ; slice
    s_sub_u32 s51, s50, 1024
    s_lshl_b32 s52, s50, 6
    s_add_u32 s52, s52, {WS_PART}
    s_and_b32 s53, s51, 63
    s_lshl_b32 s53, s53, 6
    s_add_u32 s53, s53, {WS_PARTZ}   ; z source
    s_cmp_lt_u32 s50, 1024
    s_cselect_b32 s52, s52, s53
    s_cselect_b32 s53, 16, 12
    v_lshrrev_b32 v4, 2, v1
    v_lshlrev_b32 v4, s53, v4
    v_and_b32 v5, 3, v1
    v_lshl_add_u32 v4, v5, 4, v4
    v_add_u32 v36, s52, v4
    s_lshl_b32 s52, s50, 5
    s_add_u32 s52, s52, {WS_KVF}
    v_lshlrev_b32 v5, 3, v5
    v_add_u32 v37, s52, v5
    s_lshl_b32 s50, s46, 12
    s_add_u32 s51, s50, {WS_KVF}
    v_add_u32 v38, s51, v17
    s_add_u32 s51, s50, {K2_KV}
    v_add_u32 v39, s51, v17
    s_lshl_b32 s50, s46, 8
    v_lshlrev_b32 v4, 2, v1
    v_add_u32 v4, s50, v4            ; w*256 + lane*4
    v_add_u32 v8, {WS_KVF + 32768}, v4
    v_add_u32 v9, {K2_KV + 32768}, v4
    s_lshl_b32 s50, s48, 11
    s_add_u32 s50, s50, {K2_KV}
    v_add_u32 v18, s50, v17
    s_lshl_b32 s50, s48, 7
    s_add_u32 s50, s50, {K2_KV + 32768}
    v_lshlrev_b32 v4, 4, v3
    v_add_u32 v19, s50, v4
    """)
    a(f"""
    v_lshrrev_b32 v4, 3, v0
    v_and_b32 v5, 7, v0
    s_lshl_b32 s50, s60, 6
    v_add_u32 v6, s50, v4
    v_lshlrev_b32 v6, 10, v6
    v_lshlrev_b32 v7, 4, v5
    s_lshl_b32 s50, s61, 7
    v_add_u32 v7, s50, v7
    v_add_u32 v232, v6, v7
    v_mov_b32 v233, v7               ; b2 offset
    s_movk_i32 s50, 272
    v_mul_lo_u32 v6, v4, s50
    v_lshl_add_u32 v234, v5, 5, v6
    s_lshl_b32 s51, s47, 4
    v_add_u32 v6, s51, v2
    v_mul_lo_u32 v6, v6, s50
    v_lshl_add_u32 v6, v3, 4, v6
    s_mul_i32 s51, s48, {2*17408}
    v_add_u32 v235, s51, v6
    """)
    for r in range(136, 168):
        a(f"v_mov_b32 v{r}, 0")
    a("s_waitcnt lgkmcnt(0)")
    srd(a, 20, 4, 2048 * 1024)
    srd(a, 24, 6, 512 * 1024)
    srd(a, 28, 8, 1792 * 1024)
    srd(a, 32, 16, WS_SIZE)
    srd(a, 36, 10, 1024)
    srd(a, 64, 12, 2048 * 1024)
    q = VmQ(a)
    AR = 40
    NA = K2_NA
    BF = [88, 104, 120]
    KZ = [168, 184, 240]

    ATT0 = int(os.environ.get("ATT0", "20"))
    ORD = list(range(ATT0)) + list(range(28, 36)) + list(range(ATT0, 28))
    isatt = lambda p: ORD[p] >= 28

    def dma(s):
        slot = s % K2_NS
        sr = "s[28:31]" if not isatt(s) else "s[24:27]"
        so = (ORD[s] if not isatt(s) else ORD[s] - 28) * 65536
        if os.environ.get("K2NOB"):
            so = 0
        return f"s_mov_b32 s56, {so}\ns_add_u32 m0, s54, {slot*8192}\nbuffer_load_dwordx4 v10, {sr}, s56 offen lds"

    frags = []
    for s in range(36):
        frags.append((s, 0))
        if isatt(s):
            frags.append((s, 1))
    first_frag = {}
    for k, (s, e) in enumerate(frags):
        first_frag.setdefault(s, k)

    def aload(k):
        p, e = frags[k]
        s = ORD[p]
        r = AR + 4 * (k % NA)
        if os.environ.get("K2NOA"):
            return f"s_mov_b32 s57, 0\nbuffer_load_dwordx4 {vr(r,4)}, v11, s[32:35], s57 offen"
        if s < 28:
            return f"s_mov_b32 s57, {s*2048}\nbuffer_load_dwordx4 {vr(r,4)}, v11, s[32:35], s57 offen"
        return f"s_mov_b32 s57, {(s-28)*4096}\nbuffer_load_dwordx4 {vr(r,4)}, v12, s[32:35], s57 offen offset:{e*1024}"

    a("buffer_load_dwordx4 v[20:23], v36, s[32:35], 0 offen")
    q.issue("part")
    nextA = 0
    nextB = 0
    PRE = int(os.environ.get("PRE", "4"))
    for s in range(PRE):
        a(dma(s)); q.issue(("B", s)); nextB += 1
        a(aload(nextA)); q.issue(("A", nextA)); nextA += 1
    stamp(a, 1)
    q.wait(["part"])
    stamp(a, 2)
    for r in range(4):
        a(f"v_add_f32_dpp v{24+r}, v{20+r}, v{20+r} row_ror:8 row_mask:0xf bank_mask:0xf")
    for r in range(4):
        a(f"v_add_f32_dpp v{20+r}, v{24+r}, v{24+r} row_ror:4 row_mask:0xf bank_mask:0xf")
    for sw in ("v_permlane16_swap_b32", "v_permlane32_swap_b32"):
        for r in range(4):
            a(f"v_mov_b32 v{24+r}, v{20+r}")
        for r in range(4):
            a(f"{sw} v{20+r}, v{24+r}")
        for r in range(4):
            a(f"v_add_f32 v{20+r}, v{20+r}, v{24+r}")
    a("""
    v_cvt_pk_bf16_f32 v24, v20, v21
    v_cvt_pk_bf16_f32 v25, v22, v23
    v_min_u32 v24, 0xfffeffff, v24
    v_min_u32 v25, 0xfffeffff, v25
    s_mov_b64 exec, 15
    buffer_store_dwordx2 v[24:25], v37, s[32:35], 0 offen sc0 sc1
    s_mov_b64 exec, -1
    """)
    q.issue("kvst")

    def reads(s):
        slot = s % K2_NS
        f = BF[s % 3]
        r = []
        vb, off = (13, slot * 8192) if slot < 8 else (236, (slot - 8) * 8192)
        for t in range(4):
            r.append(f"ds_read_b64_tr_b16 {vr(f+4*t,2)}, v{vb+t} offset:{off}")
            r.append(f"ds_read_b64_tr_b16 {vr(f+4*t+2,2)}, v{vb+t} offset:{off+2048}")
        if isatt(s):
            kz = KZ[s % 3]
            hb = (ORD[s] - 28) * 4096
            r.append(f"ds_read_b128 {vr(kz,4)}, v18 offset:{hb}")
            r.append(f"ds_read_b128 {vr(kz+4,4)}, v19 offset:{hb//16}")
            r.append(f"ds_read_b128 {vr(kz+8,4)}, v18 offset:{hb+1024}")
            r.append(f"ds_read_b128 {vr(kz+12,4)}, v19 offset:{hb//16+64}")
        return r

    def kvloads():
        r = []
        for k in range(4):
            r.append(f"buffer_load_dwordx4 {vr(168+4*k,4)}, v38, s[32:35], 0 offen offset:{k*1024} sc1")
        r.append("buffer_load_dword v184, v8, s[32:35], 0 offen sc1")
        return r

    q.wait([("B", 1)])
    a("s_barrier")
    lds_out = []

    def lds_issue(tag, n):
        lds_out.extend([tag] * n)

    def lds_need(tags):
        idx = -1
        for i, t in enumerate(lds_out):
            if t in tags:
                idx = i
        if idx < 0:
            return None
        n = len(lds_out) - 1 - idx
        del lds_out[:idx + 1]
        return min(n, 15) if n <= 15 else None if False else min(n, 15)

    for s0 in (0, 1):
        rr = reads(s0)
        for r in rr:
            a(r)
        lds_issue(("r", s0), len(rr))
    for s in range(K2_NST):
        K2ST = (0, 4, 10, 16, 22, 28)
        if s in K2ST:
            stamp(a, 3 + K2ST.index(s))
        f = BF[s % 3]
        k0 = first_frag[s]
        nfr = 1 if not isatt(s) else 2
        tags = [("A", k0 + nfr - 1)]
        even = (s & 1) == 0
        if even:
            tags += [("B", x) for x in (s + 2, s + 3) if x < K2_NST]
        if s == P_KVW:
            tags.append("kvf")
        ltags = [("r", s)]
        if even:
            ltags.append("kvw")
        ln = lds_need(ltags)
        q.wait(tags, lgkm=ln)
        if s == P_KVW:
            a("s_mov_b32 s49, 0")
            a("K2_KVCHK:")
            a("v_max3_u32 v26, v168, v169, v184")
            for r in range(170, 184, 2):
                a(f"v_max3_u32 v26, v26, v{r}, v{r+1}")
            a(f"""
            v_cmp_eq_u32 vcc, -1, v26
            s_cbranch_vccz K2_KVOK
            s_add_u32 s49, s49, 1
            s_cmp_gt_u32 s49, {KV_TRIES}
            s_cbranch_scc1 K2_KVSELF
            s_sleep 4
            """)
            for x in kvloads():
                a(x)
            a("""
            s_waitcnt vmcnt(0)
            s_branch K2_KVCHK
            K2_KVSELF:
            """)
            a(f"""
            s_lshl_b32 s50, s46, 13
            s_add_u32 s50, s50, {WS_PART}
            v_lshlrev_b32 v26, 5, v1
            v_add_u32 v26, s50, v26
            """)
            for k in range(4):
                for r in range(8):
                    a(f"v_mov_b32 v{200+r}, 0")
                a(f"""
                s_mov_b32 s50, {k*2048}
                K2_KVS_{k}:
                buffer_load_dwordx4 v[208:211], v26, s[32:35], s50 offen
                buffer_load_dwordx4 v[212:215], v26, s[32:35], s50 offen offset:16
                s_waitcnt vmcnt(0)
                """)
                for r in range(8):
                    a(f"v_add_f32 v{200+r}, v{200+r}, v{208+r}")
                a(f"""
                s_add_u32 s50, s50, 65536
                s_cmp_lt_u32 s50, {16*65536}
                s_cbranch_scc1 K2_KVS_{k}
                """)
                for r in range(4):
                    a(f"v_cvt_pk_bf16_f32 v{168+4*k+r}, v{200+2*r}, v{201+2*r}")
            a(f"""
            s_lshl_b32 s50, s46, 9
            s_add_u32 s50, s50, {WS_PARTZ}
            v_lshlrev_b32 v26, 3, v1
            v_add_u32 v26, s50, v26
            v_mov_b32 v200, 0
            v_mov_b32 v201, 0
            s_mov_b32 s50, 0
            K2_KVS_Z:
            buffer_load_dwordx2 v[208:209], v26, s[32:35], s50 offen
            s_waitcnt vmcnt(0)
            v_add_f32 v200, v200, v208
            v_add_f32 v201, v201, v209
            s_add_u32 s50, s50, 4096
            s_cmp_lt_u32 s50, 65536
            s_cbranch_scc1 K2_KVS_Z
            v_cvt_pk_bf16_f32 v184, v200, v201
            """)
            a("K2_KVOK:")
            a("s_nop 1")
        if even:
            a("s_barrier")
        other = []
        if s + 2 < K2_NST:
            rr = reads(s + 2)
            other += rr
            lds_issue(("r", s + 2), len(rr))
        if s in (P_KVW, P_KVW + 1):
            for r in range(2 * (s - P_KVW), 2 * (s - P_KVW) + 2):
                other.append(f"ds_write_b128 v39, {vr(168+4*r,4)} offset:{r*1024}")
                lds_issue("kvw", 1)
            if s == P_KVW:
                other.append("ds_write_b32 v9, v184")
                lds_issue("kvw", 1)
        if s == P_KVL:
            for x in kvloads():
                other.append(x)
                q.issue("kvf")
        if s == 6:
            other.append("buffer_load_dwordx4 v[28:31], v232, s[20:23], 0 offen")
            q.issue("x")
            other.append("buffer_load_dwordx4 v[32:35], v233, s[36:39], 0 offen")
            q.issue("b2")
        lim = (s if even else s - 1) + K2_NS
        for rep in range(3):
            if nextB < K2_NST and nextB <= lim:
                other.append(dma(nextB)); q.issue(("B", nextB)); nextB += 1
            if nextA < len(frags) and nextA - NA < k0:
                other.append(aload(nextA)); q.issue(("A", nextA)); nextA += 1
        if not isatt(s):
            ar = AR + 4 * (k0 % NA)
            mf = [f"v_mfma_f32_16x16x32_bf16 {vr(136+4*t,4)}, {vr(f+4*t,4)}, {vr(ar,4)}, {vr(136+4*t,4)}" for t in range(4)]
            for x in merge(mf, other):
                a(x)
        else:
            kz = KZ[s % 3]
            p0 = AR + 4 * (k0 % NA)
            p1 = AR + 4 * ((k0 + 1) % NA)
            mf = [
                f"v_mfma_f32_16x16x32_bf16 v[200:203], {vr(kz,4)}, {vr(p0,4)}, 0",
                f"v_mfma_f32_16x16x32_bf16 v[204:207], {vr(kz+4,4)}, {vr(p0,4)}, 0",
                f"v_mfma_f32_16x16x32_bf16 v[208:211], {vr(kz+8,4)}, {vr(p1,4)}, 0",
                f"v_mfma_f32_16x16x32_bf16 v[212:215], {vr(kz+12,4)}, {vr(p1,4)}, 0",
            ]
            for x in merge(mf, other):
                a(x)
            a("""
            v_add_f32 v220, 0x358637bd, v204
            v_add_f32 v221, 0x358637bd, v212
            v_rcp_f32 v220, v220
            v_rcp_f32 v221, v221
            """)
            for r in range(4):
                a(f"v_mul_f32 v{200+r}, v{200+r}, v220")
            for r in range(4):
                a(f"v_mul_f32 v{208+r}, v{208+r}, v221")
            a("""
            v_cvt_pk_bf16_f32 v216, v200, v201
            v_cvt_pk_bf16_f32 v217, v202, v203
            v_cvt_pk_bf16_f32 v218, v208, v209
            v_cvt_pk_bf16_f32 v219, v210, v211
            """)
            for t in range(4):
                a(f"v_mfma_f32_16x16x32_bf16 {vr(152+4*t,4)}, {vr(f+4*t,4)}, v[216:219], {vr(152+4*t,4)}")
    stamp(a, 11)
    a("s_barrier")
    for t in range(4):
        a(f"ds_write_b128 v235, {vr(136+4*t,4)} offset:{64*t}")
        a(f"ds_write_b128 v235, {vr(152+4*t,4)} offset:{17408+64*t}")
    a("s_waitcnt lgkmcnt(0)")
    a("s_barrier")
    for arr in range(4):
        a(f"ds_read_b128 {vr(40+8*arr,4)}, v234 offset:{arr*17408}")
        a(f"ds_read_b128 {vr(44+8*arr,4)}, v234 offset:{arr*17408+16}")
    q.wait(["x", "b2"], lgkm=0)
    for j in range(4):
        a(f"""
        v_lshlrev_b32 v{72+2*j}, 16, v{32+j}
        v_and_b32 v{73+2*j}, 0xffff0000, v{32+j}
        v_lshlrev_b32 v{80+2*j}, 16, v{28+j}
        v_and_b32 v{81+2*j}, 0xffff0000, v{28+j}
        """)
    for e in range(8):
        a(f"v_add_f32 v{40+e}, v{40+e}, v{56+e}")
    for e in range(8):
        a(f"v_add_f32 v{48+e}, v{48+e}, v{64+e}")
    for e in range(8):
        a(f"v_add_f32 v{40+e}, v{40+e}, v{72+e}")
    for e in range(8):
        a(f"v_mul_f32_e64 v{88+e}, -v{40+e}, s55")
    for e in range(8):
        a(f"v_exp_f32 v{88+e}, v{88+e}")
    for e in range(8):
        a(f"v_add_f32 v{88+e}, 1.0, v{88+e}")
    for e in range(8):
        a(f"v_rcp_f32 v{88+e}, v{88+e}")
    for e in range(8):
        a(f"v_mul_f32 v{40+e}, v{40+e}, v{88+e}")
    for e in range(8):
        a(f"v_fma_f32 v{40+e}, v{40+e}, v{48+e}, v{80+e}")
    for j in range(4):
        a(f"v_cvt_pk_bf16_f32 v{96+j}, v{40+2*j}, v{41+2*j}")
    a("buffer_store_dwordx4 v[96:99], v232, s[64:67], 0 offen")
    stamp(a, 12)
    if PROF:
        a("s_waitcnt vmcnt(0)")
    stamp(a, 13)
    stamp(a, 15, True)
    stamp_flush(a, 1, 16)
    a("K2_END:")
    a("s_endpgm")


def kd(name, nv):
    return f""".p2align 6
.amdhsa_kernel {name}
  .amdhsa_next_free_vgpr {nv}
  .amdhsa_next_free_sgpr 102
  .amdhsa_accum_offset {nv}
  .amdhsa_group_segment_fixed_size 0
  .amdhsa_kernarg_size 96
  .amdhsa_user_sgpr_count 2
  .amdhsa_user_sgpr_kernarg_segment_ptr 1
  .amdhsa_system_sgpr_workgroup_id_x 1
.end_amdhsa_kernel
"""


def main(out):
    a = Asm()
    a.raw(f"""; Two-launch implementation (generated by exp/gen.py; hand-designed assembly).
; @launch kernel=k1_kernel grid=(256,1,1) block=(512,1,1) lds={K1_LDS}
; @launch kernel=k2_kernel grid=(256,1,1) block=(512,1,1) lds={K2_LDS}
.amdgcn_target "amdgcn-amd-amdhsa--gfx950"
.text""")
    gen_k1(a)
    gen_k2(a)
    a.raw('.section .rodata,"a"\n' + kd("k1_kernel", 256) + kd("k2_kernel", 256))
    txt = a.finish()
    open(out, "w").write(txt)
    print("wrote", out, "lines", txt.count("\n"), "pads", a.npad)


if __name__ == "__main__":
    main(sys.argv[1] if len(sys.argv) > 1 else f"cdna_kernels/{NAME}.s")
```

```python
import sys
sys.path.insert(0, "exp")
from asmlib import Asm, VmQ, merge

NAME = "recurrent_scan__linear_kernel_hedgehog__dense_activation_squared_relu__prompt"

WS_H = 0
WS_PQ = 8 << 20
WS_PART = 12 << 20
WS_PARTZ = 13 << 20
WS_KVF = 14 << 20
WS_SIZE = 16 << 20

LOG2E = "0x3fb8aa3b"


def srd(a, d, lo, nbytes):
    a(f"""
    s_mov_b32 s{d}, s{lo}
    s_and_b32 s{d+1}, s{lo+1}, 0xffff
    s_mov_b32 s{d+2}, {nbytes}
    s_mov_b32 s{d+3}, 0x20000
    """)


import os
PROF = os.environ.get("PROF", "") != ""
PF1 = os.environ.get("PF1", "0") == "1"
PFR = os.environ.get("PFR", "1") == "1"
CODEPF = os.environ.get("CODEPF", "0") == "1"
PF2 = os.environ.get("PF2", "1") == "1"
PFW = os.environ.get("PFW", "1") == "1"
STF = os.environ.get("STF", "sc0 sc1")
WS_PROF = 15 << 20


STAMP_SLOT = {k: i for i, k in enumerate(eval(os.environ.get('SLOTS', '[0, 1, 2, 3, 4, 5, 6, 7, 8, 11, 12]')))}


def stamp(a, idx, clk=False):
    if PROF:
        if idx in STAMP_SLOT:
            b = 80 + 2 * STAMP_SLOT[idx]
            a(f"{'s_memtime' if clk else 's_memrealtime'} s[{b}:{b+1}]")


def stamp_flush(a, kern, n, vt=250):
    if not PROF:
        return
    a("s_waitcnt lgkmcnt(0)")
    a(f"""
    s_lshl_b32 s49, s2, 3
    s_add_u32 s49, s49, s46
    s_lshl_b32 s49, s49, 6
    s_add_u32 s49, s49, {WS_PROF + kern*131072}
    v_mov_b32 v{vt}, 0
    s_mov_b64 exec, 1
    """)
    for i in range(n):
        if i not in STAMP_SLOT:
            continue
        a(f"v_mov_b32 v{vt+1}, s{80+2*STAMP_SLOT[i]}")
        a(f"buffer_store_dword v{vt+1}, v{vt}, s[32:35], s49 offen offset:{4*i}")
        a("s_nop 1")
    a("s_mov_b64 exec, -1")


def vr(b, n):
    return f"v[{b}:{b+n-1}]"


def softmax_units(a, units, sl2e):
    def each(f):
        for u in units:
            a(f(u))
    P = lambda u, r: f"v{u['P']+r}"
    T = lambda u, r: f"v{u['T']+r}"
    each(lambda u: f"v_max3_f32 {T(u,8)}, {P(u,0)}, {P(u,1)}, {P(u,2)}")
    each(lambda u: f"v_max3_f32 {T(u,9)}, -{P(u,0)}, -{P(u,1)}, -{P(u,2)}")
    each(lambda u: f"v_max_f32 {T(u,8)}, {T(u,8)}, {P(u,3)}")
    each(lambda u: f"v_max_f32_e64 {T(u,9)}, {T(u,9)}, -{P(u,3)}")

    def allreduce(op):
        each(lambda u: f"v_permlane32_swap_b32 {T(u,8)}, {T(u,9)}")
        each(lambda u: f"{op} {T(u,10)}, {T(u,8)}, {T(u,9)}")
        each(lambda u: f"v_mov_b32 {T(u,11)}, {T(u,10)}")
        each(lambda u: f"v_permlane16_swap_b32 {T(u,10)}, {T(u,11)}")
        each(lambda u: f"{op} {T(u,8)}, {T(u,10)}, {T(u,11)}")
        each(lambda u: f"v_mov_b32 {T(u,9)}, {T(u,8)}")
        each(lambda u: f"v_permlane32_swap_b32 {T(u,8)}, {T(u,9)}")
    allreduce("v_max_f32")
    S = lambda u: u.get('S', sl2e)
    each(lambda u: f"v_mul_f32 {T(u,8)}, {S(u)}, {T(u,8)}")
    each(lambda u: f"v_mul_f32 {T(u,9)}, {S(u)}, {T(u,9)}")
    for r in range(4):
        each(lambda u: f"v_fma_f32 {T(u,r)}, {P(u,r)}, {S(u)}, -{T(u,8)}")
        each(lambda u: f"v_fma_f32 {T(u,4+r)}, -{P(u,r)}, {S(u)}, -{T(u,9)}")
    for r in range(8):
        each(lambda u: f"v_exp_f32 {T(u,r)}, {T(u,r)}")
    each(lambda u: f"v_add_f32 {T(u,8)}, {T(u,0)}, {T(u,1)}")
    each(lambda u: f"v_add_f32 {T(u,9)}, {T(u,4)}, {T(u,5)}")
    each(lambda u: f"v_add_f32 {T(u,10)}, {T(u,2)}, {T(u,3)}")
    each(lambda u: f"v_add_f32 {T(u,11)}, {T(u,6)}, {T(u,7)}")
    each(lambda u: f"v_add_f32 {T(u,8)}, {T(u,8)}, {T(u,10)}")
    each(lambda u: f"v_add_f32 {T(u,9)}, {T(u,9)}, {T(u,11)}")
    allreduce("v_add_f32")
    each(lambda u: f"v_rcp_f32 {T(u,8)}, {T(u,8)}")
    each(lambda u: f"v_rcp_f32 {T(u,9)}, {T(u,9)}")
    for r in range(4):
        each(lambda u: f"v_mul_f32 {T(u,r)}, {T(u,r)}, {T(u,8)}")
        each(lambda u: f"v_mul_f32 {T(u,4+r)}, {T(u,4+r)}, {T(u,9)}")
    for r in range(4):
        each(lambda u: f"v_cvt_pk_bf16_f32 v{u['O']+r}, {T(u,2*r)}, {T(u,2*r+1)}")


K1_NS = 3
K1_A, K1_Q, K1_H = 0, 49152, 98304
K1_WPHI = 147456
K1_RS = 148480
K1_CS = K1_RS + 1024
K1_LDS = K1_CS + 4096


def gen_k1(a):
    a.raw(".globl k1_kernel\n.p2align 8\n.type k1_kernel,@function\nk1_kernel:")
    a(f"""
    s_cmp_ge_u32 s2, 256
    s_cbranch_scc1 K1_END
    s_load_dwordx4 s[4:7], s[0:1], 0
    s_load_dwordx4 s[8:11], s[0:1], 16
    s_load_dwordx4 s[12:15], s[0:1], 40
    s_load_dwordx2 s[16:17], s[0:1], 88
    s_load_dwordx2 s[18:19], s[0:1], 56
    """)
    stamp(a, 0)
    stamp(a, 14, True)
    a(f"""
    v_lshrrev_b32 v4, 6, v0
    v_and_b32 v1, 63, v0
    v_and_b32 v2, 15, v0
    v_bfe_u32 v3, v0, 4, 2
    v_readfirstlane_b32 s46, v4
    s_and_b32 s50, s2, 7             ; xcd
    s_lshr_b32 s51, s2, 3            ; j
    s_and_b32 s52, s50, 1
    s_lshl_b32 s52, s52, 3
    s_and_b32 s53, s51, 7
    s_add_u32 s44, s52, s53          ; rb
    s_lshr_b32 s52, s50, 1
    s_lshl_b32 s52, s52, 2
    s_lshr_b32 s53, s51, 3
    s_add_u32 s45, s52, s53          ; cb
    s_and_b32 s43, s45, 1            ; par
    s_and_b32 s47, s46, 3            ; rg
    s_lshr_b32 s48, s46, 2           ; role
    s_mov_b32 s55, {LOG2E}
    v_lshlrev_b32 v37, 4, v1         ; lane*16
    s_lshl_b32 s54, s46, 11
    """)
    a(f"""
    s_lshl_b32 s50, s44, 7
    s_lshl_b32 s51, s46, 4
    s_add_u32 s50, s50, s51
    v_lshrrev_b32 v4, 3, v1
    v_add_u32 v4, s50, v4
    v_lshlrev_b32 v4, 10, v4
    v_and_b32 v5, 7, v1
    v_xor_b32 v6, v5, v3
    v_lshl_add_u32 v10, v6, 4, v4
    v_xor_b32 v6, 4, v6
    v_lshl_add_u32 v11, v6, 4, v4
    v_add_u32 v11, 0x2000, v11
    """)
    a(f"""
    s_and_b32 s50, s46, 1
    s_lshl_b32 s50, s50, 2
    v_or_b32 v4, s50, v3
    v_lshlrev_b32 v4, 1, v4
    v_xor_b32 v4, v4, v2             ; u
    s_lshl_b32 s51, s46, 3
    v_add_u32 v5, s51, v3            ; row (e=0)
    v_lshrrev_b32 v6, 2, v4
    v_min_u32 v6, 2, v6              ; seg
    v_and_b32 v7, 3, v4
    v_lshlrev_b32 v6, 10, v6
    v_lshl_add_u32 v6, v7, 4, v6
    v_mul_u32_u24 v7, 3072, v5
    s_lshl_b32 s51, s45, 6
    v_add3_u32 v12, v6, v7, s51
    v_add_u32 v13, {4*3072}, v12
    v_min_u32 v6, 13, v4
    s_lshl_b32 s50, s43, 1
    v_add_u32 v6, s50, v6
    v_subrev_u32 v7, 14, v6
    v_min_u32 v6, v6, v7
    v_mul_u32_u24 v7, 3584, v5
    s_mul_i32 s51, s45, 224
    v_lshl_add_u32 v6, v6, 4, v7
    v_add_u32 v14, s51, v6
    v_add_u32 v15, {4*3584}, v14
    """)
    if PFR:
        a(f"""
        s_and_b32 s50, s2, 7
        s_lshr_b32 s51, s2, 3            ; j
        s_and_b32 s52, s50, 1
        s_lshl_b32 s52, s52, 10
        s_lshl_b32 s53, s51, 5
        s_add_u32 s52, s52, s53
        s_lshr_b32 s53, s47, 1
        s_lshl_b32 s53, s53, 4
        s_add_u32 s52, s52, s53
        v_add_u32 v4, s52, v2
        v_lshlrev_b32 v4, 10, v4         ; x variant
        s_lshr_b32 s50, s50, 1           ; xcd>>1
        v_lshrrev_b32 v5, 3, v2
        s_lshl_b32 s52, s51, 1
        v_add_u32 v5, s52, v5
        v_and_b32 v6, 7, v2
        v_min_u32 v7, 5, v6
        v_lshrrev_b32 v8, 1, v7
        v_and_b32 v7, 1, v7
        v_lshlrev_b32 v8, 10, v8
        v_lshl_add_u32 v8, v7, 7, v8
        v_mul_u32_u24 v7, 3072, v5
        s_lshl_b32 s52, s50, 8
        v_add3_u32 v7, v7, v8, s52
        v_min_u32 v6, 6, v6
        v_mul_u32_u24 v8, 3584, v5
        v_lshl_add_u32 v8, v6, 7, v8
        s_mul_i32 s52, s50, 896
        v_add_u32 v8, s52, v8            ; w1 variant
        s_cmp_eq_u32 s47, 1
        s_cselect_b64 s[52:53], -1, 0
        s_cmp_eq_u32 s47, 2
        s_cselect_b64 s[50:51], -1, 0
        v_cndmask_b32 v4, v4, v7, s[52:53]
        v_cndmask_b32 v254, v4, v8, s[50:51]
        s_movk_i32 s62, 128
        s_cmp_eq_u32 s47, 1
        s_cselect_b32 s62, {64*3072}, s62
        s_cmp_eq_u32 s47, 2
        s_cselect_b32 s62, {64*3584}, s62
        s_mul_i32 s63, s62, s48
        """)
    a("s_waitcnt lgkmcnt(0)")
    srd(a, 20, 4, 2048 * 1024)
    srd(a, 24, 6, 512 * 3072)
    srd(a, 28, 12, 512 * 3584)
    q = VmQ(a)
    if PFR:
        a(f"""
        s_cmp_eq_u32 s47, 1
        s_cselect_b32 s76, s24, s20
        s_cselect_b32 s77, s25, s21
        s_cselect_b32 s78, s26, s22
        s_cmp_eq_u32 s47, 2
        s_cselect_b32 s76, s28, s76
        s_cselect_b32 s77, s29, s77
        s_cselect_b32 s78, s30, s78
        s_mov_b32 s79, 0x20000
        buffer_load_dword v255, v254, s[76:79], s63 offen
        """)
        q.issue("pf")

    def dma(s):
        slot = s % K1_NS
        o = slot * 16384
        return [
            f"s_movk_i32 s57, {s*128}\ns_add_u32 m0, s54, {K1_A + o}\nbuffer_load_dwordx4 v10, s[20:23], s57 offen lds",
            f"s_add_u32 m0, s54, {K1_A + o + 1024}\nbuffer_load_dwordx4 v11, s[20:23], s57 offen lds",
            f"s_mov_b32 s58, {s*64*3072}\ns_add_u32 m0, s54, {K1_Q + o}\nbuffer_load_dwordx4 v12, s[24:27], s58 offen lds",
            f"s_add_u32 m0, s54, {K1_Q + o + 1024}\nbuffer_load_dwordx4 v13, s[24:27], s58 offen lds",
            f"s_mov_b32 s59, {s*64*3584}\ns_add_u32 m0, s54, {K1_H + o}\nbuffer_load_dwordx4 v14, s[28:31], s59 offen lds",
            f"s_add_u32 m0, s54, {K1_H + o + 1024}\nbuffer_load_dwordx4 v15, s[28:31], s59 offen lds",
        ]

    for s in range(2):
        for d in dma(s):
            a(d)
            q.issue(("st", s))
        if s == 0 and os.environ.get("PBAR", "1") == "1":
            a("s_barrier")
    srd(a, 32, 16, WS_SIZE)
    srd(a, 36, 14, 3584)
    srd(a, 64, 8, 16384)
    if PFW:
        srd(a, 68, 18, 1792 * 1024)
        srd(a, 72, 10, 512 * 1024)
    a(f"""
    s_mov_b32 m0, {K1_WPHI}
    s_lshl_b32 s51, s45, 10
    buffer_load_dwordx4 v37, s[64:67], s51 offen lds
    s_lshl_b32 s50, s2, 8
    s_add_u32 s50, s50, {WS_KVF}
    v_lshlrev_b32 v4, 2, v1
    v_mov_b32 v5, -1
    buffer_store_dword v5, v4, s[32:35], s50 offen
    """)
    q.issue("wphi")
    q.issue("sent")
    stamp(a, 1)
    FS = [64, 100]
    ACC = 136
    RSUM, RSQ, CSA = 192, 196, 200
    ONES = 228
    a(f"""
    v_lshrrev_b32 v4, 1, v2
    v_xor_b32 v4, v4, v3
    v_lshlrev_b32 v4, 4, v4
    s_lshl_b32 s50, s47, 5
    s_lshl_b32 s51, s48, 4
    s_add_u32 s51, s51, s50
    v_add_u32 v5, s51, v2
    v_lshl_add_u32 v16, v5, 7, v4
    v_xor_b32 v17, 64, v16
    v_xor_b32 v18, 0x800, v16
    v_xor_b32 v19, 0x800, v17
    v_lshlrev_b32 v4, 3, v5
    v_add_u32 v33, {K1_RS}, v4
    v_xor_b32 v35, 0x80, v33
    s_lshl_b32 s50, s47, 6
    s_lshl_b32 s51, s48, 9
    s_add_u32 s51, s51, {K1_CS}
    s_add_u32 s50, s50, s51
    v_lshlrev_b32 v4, 4, v3
    v_add_u32 v34, s50, v4
    v_add_u32 v36, s51, v4
    v_lshrrev_b32 v4, 2, v2
    v_and_b32 v5, 1, v3
    v_lshl_or_b32 v5, v5, 2, v4
    v_lshlrev_b32 v5, 5, v5
    v_lshl_add_u32 v6, v3, 3, v4     ; row = 8g + (i>>2)
    v_lshl_add_u32 v5, v6, 8, v5
    v_and_b32 v6, 3, v2
    v_lshl_add_u32 v5, v6, 3, v5
    s_mul_i32 s50, s48, {K1_H - K1_Q}
    s_add_u32 s50, s50, {K1_Q}
    v_add_u32 v232, s50, v5
    """)
    for t in range(1, 7):
        a(f"v_xor_b32 v{232+t}, {t << 5}, v232")
    for r in range(ACC, ONES):
        a(f"v_mov_b32 v{r}, 0")
    for r in range(4):
        a(f"v_mov_b32 v{ONES+r}, 0x3f803f80")
    a(f"""
    v_lshl_add_u32 v8, v3, 2, 0
    v_lshrrev_b32 v9, 2, v2
    v_add_u32 v8, v8, v9
    v_lshlrev_b32 v8, 5, v8
    v_and_b32 v9, 3, v2
    v_lshl_add_u32 v8, v9, 3, v8
    v_add_u32 v38, {K1_WPHI}, v8
    s_lshl_b32 s42, s44, 3
    s_lshl_b32 s50, s47, 1
    s_add_u32 s42, s42, s50
    """)
    a("s_cmp_eq_u32 s48, 1")
    a("s_cbranch_scc1 K1_HPATH")

    def k1_pf(sfx):
        return (f"""
        s_and_b32 s50, s2, 7
        s_lshr_b32 s51, s2, 3            ; j
        s_cmp_ge_u32 s46, 4
        s_cbranch_scc1 K1_PF_W{sfx}
        s_and_b32 s40, s50, 1
        s_lshl_b32 s40, s40, 20
        s_lshl_b32 s41, s51, 15
        s_add_u32 s40, s40, s41
        s_lshl_b32 s41, s46, 13
        s_add_u32 s40, s40, s41
        v_lshlrev_b32 v4, 7, v1
        buffer_load_dword v255, v4, s[20:23], s40 offen
        s_branch K1_PF_E{sfx}
        K1_PF_W{sfx}:
        s_and_b32 s41, s46, 1
        s_lshl_b32 s41, s41, 3
        s_lshl_b32 s40, s51, 4
        s_add_u32 s40, s40, s41
        v_lshrrev_b32 v4, 3, v1
        v_add_u32 v4, s40, v4            ; row
        v_and_b32 v5, 7, v1
        s_lshr_b32 s50, s50, 1           ; xcd>>1
        s_cmp_ge_u32 s46, 6
        s_cbranch_scc1 K1_PF_H{sfx}
        v_min_u32 v5, 5, v5
        v_lshrrev_b32 v6, 1, v5
        v_and_b32 v5, 1, v5
        v_lshlrev_b32 v6, 10, v6
        v_lshl_add_u32 v6, v5, 7, v6
        s_movk_i32 s41, 3072
        v_mul_lo_u32 v4, v4, s41
        v_add_u32 v4, v4, v6
        s_lshl_b32 s50, s50, 8
        buffer_load_dword v255, v4, s[24:27], s50 offen
        s_branch K1_PF_E{sfx}
        K1_PF_H{sfx}:
        s_movk_i32 s41, 3584
        v_mul_lo_u32 v4, v4, s41
        v_lshl_add_u32 v4, v5, 7, v4
        s_mul_i32 s50, s50, 896
        buffer_load_dword v255, v4, s[28:31], s50 offen
        K1_PF_E{sfx}:
        """)

    PKI, VI, QXI = 0, 16384, 24576

    def path(H, q):
        nt = 7 if H else 6
        if H and CODEPF:
            a(f"""
            s_getpc_b64 s[50:51]
            K1_PCREF:
            s_sub_u32 s50, s50, K1_PCREF-k1_kernel
            s_subb_u32 s51, s51, 0
            s_lshl_b32 s52, s47, 14
            v_lshlrev_b32 v4, 7, v1
            v_add_u32 v4, s52, v4
            v_add_u32 v5, 0x2000, v4
            v_min_u32 v4, CODE_END-k1_kernel-4, v4
            v_min_u32 v5, CODE_END-k1_kernel-4, v5
            global_load_dword v255, v4, s[50:51]
            global_load_dword v255, v5, s[50:51]
            """)
            q.issue("cpf"); q.issue("cpf")
        if H:
            a(f"""
            s_mul_i32 s50, s45, 224
            s_lshl_b32 s51, s43, 5
            s_add_u32 s51, s51, s50
            v_lshlrev_b32 v4, 3, v3
            v_add_u32 v5, s51, v4
            s_mul_i32 s51, s43, 192
            s_sub_u32 s51, 192, s51
            s_add_u32 s51, s51, s50
            v_add_u32 v6, s51, v4
            """)
            for t in range(6):
                a(f"buffer_load_dwordx2 {vr(40+2*t,2)}, v5, s[36:39], 0 offen offset:{32*t}")
                q.issue("bias")
            a(f"buffer_load_dwordx2 {vr(52,2)}, v6, s[36:39], 0 offen")
            q.issue("bias")

        def reads(s, kk):
            o = (s % K1_NS) * 16384
            f = FS[kk]
            r = []
            for mi in range(2):
                r.append(f"ds_read_b128 {vr(f+4*mi,4)}, v{16+kk+2*mi} offset:{o}")
            for t in range(nt):
                r.append(f"ds_read_b64_tr_b16 {vr(f+8+4*t,2)}, v{232+t} offset:{o + kk*8192}")
                r.append(f"ds_read_b64_tr_b16 {vr(f+8+4*t+2,2)}, v{232+t} offset:{o + kk*8192 + 1024}")
            return r

        def compute(s, kk, other):
            f = FS[kk]
            mf = []
            for t in range(nt):
                for mi in range(2):
                    c = ACC + 8 * t + 4 * mi
                    mf.append(f"v_mfma_f32_16x16x32_bf16 {vr(c,4)}, {vr(f+8+4*t,4)}, {vr(f+4*mi,4)}, {vr(c,4)}")
            st = [f"v_mfma_f32_16x16x32_bf16 {vr(RSUM,4)}, {vr(ONES,4)}, {vr(f,4)}, {vr(RSUM,4)}",
                  f"v_mfma_f32_16x16x32_bf16 {vr(RSQ,4)}, {vr(f,4)}, {vr(f,4)}, {vr(RSQ,4)}"]
            if (s, kk) == (7, 1):
                for x in st + mf[:6]:
                    a(x)
                a(f"""
                s_mov_b64 exec, s[60:61]
                ds_write_b128 v34, {vr(CSA,4)}
                ds_write_b128 v34, {vr(CSA+4,4)} offset:256
                s_mov_b64 exec, -1
                """)
                a(mf[6]); a(mf[7])
                a(f"""
                v_cndmask_b32 v7, v{RSQ}, v{RSQ+1}, s[40:41]
                v_cndmask_b32 v7, v7, v{RSQ+2}, s[50:51]
                v_cndmask_b32 v7, v7, v{RSQ+3}, s[56:57]
                v_mov_b32 v6, v{RSUM}
                s_mov_b64 exec, s[58:59]
                ds_write_b64 v33, v[6:7]
                s_mov_b64 exec, -1
                ds_read_b64_tr_b16 v[56:57], v38
                ds_read_b64_tr_b16 v[58:59], v38 offset:512
                s_nop 1
                """)
                for x in mf[8:]:
                    a(x)
                return
            mf += st
            for x in merge(mf, other, ratio=int(os.environ.get("RATIO", "2"))):
                a(x)

        def colsum(s):
            lab = f"K1_CS_{int(H)}_{s}"
            for v in range(4):
                if v < 3:
                    a(f"s_cmp_lg_u32 s47, {v}")
                    a(f"s_cbranch_scc1 {lab}_{v+1}")
                for kk in range(2):
                    f = FS[kk]
                    for t in (v, v + 4):
                        if t < nt:
                            c = CSA + 4 * (t >> 2)
                            a(f"v_mfma_f32_16x16x32_bf16 {vr(c,4)}, {vr(f+8+4*t,4)}, {vr(ONES,4)}, {vr(c,4)}")
                if v < 3:
                    a(f"s_branch {lab}_e")
                    a(f"{lab}_{v+1}:")
            a(f"{lab}_e:")

        def k1_pfw():
            lab = f"K1_PW_{int(H)}"
            return [f"""
                s_lshr_b32 s51, s2, 3
                v_lshlrev_b32 v4, 7, v1
                s_mul_i32 s40, s51, 57344
                s_lshl_b32 s41, s46, 13
                s_add_u32 s40, s40, s41
                s_lshl_b32 s41, s51, 14
                s_cmp_eq_u32 s46, 7
                s_cbranch_scc1 {lab}_o
                buffer_load_dword v255, v4, s[68:71], s40 offen
                s_branch {lab}_e
                {lab}_o:
                buffer_load_dword v255, v4, s[72:75], s41 offen
                {lab}_e:
                """, f"""
                s_add_u32 s41, s41, 8192
                buffer_load_dword v255, v4, s[72:75], s41 offen
                """]

        def touch(st):
            return f"s_mul_i32 s63, s62, {st}\nbuffer_load_dword v255, v254, s[76:79], s63 offen"
        PFD = int(os.environ.get("PFD", "4"))
        if PFR and not H:
            for st in range(2, PFD):
                a(touch(st))
                q.issue("pf")
        q.wait([("st", 0)])
        stamp(a, 2)
        a("s_barrier")
        for r in reads(0, 0):
            a(r)
        for s in range(8):
            if s in (1, 2, 4, 6) and not os.environ.get('SLOTS'):
                stamp(a, 3 + (1, 2, 4, 6).index(s))
            a("s_waitcnt lgkmcnt(0)")
            other = reads(s, 1)
            if s == 0:
                for d in dma(2):
                    other.append(d)
                    q.issue(("st", 2))
            if PFR and not H and s + PFD < 8:
                other.append(touch(s + PFD))
                q.issue("pf")
            if PF1 and s == int(os.environ.get("PF1S", "0")):
                other.append(k1_pf("h" if H else "q"))
                q.issue("pf")
            if PFW and s == int(os.environ.get("PFWS", "6")):
                for d in k1_pfw():
                    other.append(d)
                    q.issue("pfw")
            compute(s, 0, other)
            q.wait([("st", s + 1)] if s + 1 < 8 else [], lgkm=0)
            a("s_barrier")
            if s == 7:
                a(f"""
                v_and_b32 v4, 3, v2
                v_lshrrev_b32 v5, 2, v2
                v_cmp_eq_u32 s[40:41], 1, v4
                v_cmp_eq_u32 s[50:51], 2, v4
                v_cmp_eq_u32 s[56:57], 3, v4
                v_cmp_eq_u32 s[58:59], v5, v3
                v_cmp_eq_u32 s[60:61], 0, v2
                """)
            colsum(s)
            other = []
            if s + 1 < 8:
                other += reads(s + 1, 0)
            if s + K1_NS < 8:
                for d in dma(s + K1_NS):
                    other.append(d)
                    q.issue(("st", s + K1_NS))
            compute(s, 1, other)
        stamp(a, 7)
        a("""
        s_waitcnt lgkmcnt(0)
        s_barrier
        """)
        stamp(a, 8)
        CS = 64
        a("""
        ds_read_b64 v[4:5], v33
        ds_read_b64 v[6:7], v35
        """)
        for t in range(nt):
            a(f"ds_read_b128 {vr(CS+4*t,4)}, v36 offset:{64*t}")
        a(f"s_waitcnt lgkmcnt({nt})")
        a("""
        v_mul_f32 v4, 0x3b000000, v4
        v_mul_f32 v5, 0x3b000000, v5
        v_mul_f32 v6, 0x3b000000, v6
        v_mul_f32 v7, 0x3b000000, v7
        v_fma_f32 v5, -v4, v4, v5
        v_fma_f32 v7, -v6, v6, v7
        v_max_f32 v5, 0, v5
        v_max_f32 v7, 0, v7
        v_add_f32 v5, 0x3727c5ac, v5
        v_add_f32 v7, 0x3727c5ac, v7
        v_rsq_f32 v60, v5
        v_rsq_f32 v61, v7
        v_sub_f32 v20, 0, v4
        v_sub_f32 v21, 0, v6
        v_mul_f32 v62, v20, v60
        v_mul_f32 v63, v21, v61
        v_mul_f32 v22, s55, v60
        v_mul_f32 v23, s55, v61
        s_waitcnt lgkmcnt(0)
        """)
        a(f"""
        s_lshl_b32 s50, s42, 5
        s_lshl_b32 s51, s45, 1
        s_add_u32 s50, s50, s51
        s_lshl_b32 s50, s50, 10
        s_add_u32 s60, s50, {WS_PQ}
        s_add_u32 s61, s60, 32768
        s_lshl_b32 s50, s47, 10
        s_add_u32 s50, s50, {QXI}
        v_lshlrev_b32 v39, 3, v1
        v_add_u32 v39, s50, v39
        """)
        if H:
            q.wait(["bias"])
            BU = 100
            for t in range(7):
                a(f"""
                v_lshlrev_b32 v{BU+4*t}, 16, v{40+2*t}
                v_and_b32 v{BU+4*t+1}, 0xffff0000, v{40+2*t}
                v_lshlrev_b32 v{BU+4*t+2}, 16, v{41+2*t}
                v_and_b32 v{BU+4*t+3}, 0xffff0000, v{41+2*t}
                """)
            a(f"""
            s_lshr_b32 s50, s45, 1
            s_mul_i32 s50, s50, 7
            s_lshl_b32 s51, s43, 2
            s_add_u32 s51, s51, s50
            s_add_u32 s50, s50, 3
            s_lshl_b32 s51, s51, 10
            s_lshl_b32 s50, s50, 10
            s_lshl_b32 s52, s43, 3
            s_add_u32 s50, s50, s52
            s_mul_i32 s53, s42, {56*1024}
            s_add_u32 s52, s53, {56*1024}
            s_add_u32 s56, s51, s52
            s_add_u32 s57, s51, s53          ; mi=1
            s_add_u32 s58, s50, s52
            s_add_u32 s59, s50, s53
            """)
            OUT = 192

            def hepi(mi):
                for t in range(7):
                    c = ACC + 8 * t + 4 * mi
                    tmp = 128 + 4 * (t & 1)
                    for r in range(4):
                        a(f"v_fma_f32 v{tmp+r}, v{62+mi}, v{CS+4*t+r}, v{BU+4*t+r}")
                    for r in range(4):
                        a(f"v_fma_f32 v{c+r}, v{c+r}, v{60+mi}, v{tmp+r}")
                    for r in range(4):
                        a(f"v_max_f32 v{c+r}, 0, v{c+r}")
                    for r in range(4):
                        a(f"v_mul_f32 v{c+r}, v{c+r}, v{c+r}")
                    o = OUT + 16 * mi + 2 * t
                    a(f"v_cvt_pk_bf16_f32 v{o}, v{c}, v{c+1}")
                    a(f"v_cvt_pk_bf16_f32 v{o+1}, v{c+2}, v{c+3}")
                    if t in (1, 3, 5):
                        a(f"buffer_store_dwordx4 {vr(o-2,4)}, v37, s[32:35], s{56+mi} offen offset:{(t>>1)*1024} {STF}")
                    if t == 6:
                        a(f"buffer_store_dwordx2 {vr(o,2)}, v37, s[32:35], s{58+mi} offen {STF}")
            hepi(0)
            a("s_barrier")
            a("""
            ds_read_b64 v[24:25], v39
            ds_read_b64 v[26:27], v39 offset:512
            """)
            hepi(1)
            a("s_waitcnt lgkmcnt(0)")
            units = []
            for hh in range(2):
                u = dict(P=136 + 4 * hh, T=64 + 12 * hh, O=144 + 4 * hh, hh=hh, S="v22")
                a(f"v_mfma_f32_16x16x16_bf16 {vr(u['P'],4)}, {vr(56+2*hh,2)}, {vr(24+2*hh,2)}, 0")
                units.append(u)
            a(f"""
            s_lshr_b32 s50, s47, 1
            s_and_b32 s51, s47, 1
            v_lshrrev_b32 v4, 2, v2
            v_lshl_add_u32 v4, v3, 3, v4     ; row = 8g + (i>>2)
            v_and_b32 v5, 3, v2
            v_lshlrev_b32 v5, 3, v5
            v_lshl_add_u32 v8, v4, 6, v5
            s_lshl_b32 s52, s50, 13
            s_lshl_b32 s53, s51, 5
            s_add_u32 s52, s52, s53
            s_add_u32 s52, s52, {PKI}
            v_add_u32 v8, s52, v8
            v_lshl_add_u32 v9, v4, 5, v5
            s_lshl_b32 s52, s50, 12
            s_add_u32 s52, s52, {VI}
            v_add_u32 v9, s52, v9
            s_lshl_b32 s52, s44, 5
            s_lshl_b32 s53, s45, 1
            s_add_u32 s53, s53, s50          ; head
            s_add_u32 s52, s52, s53
            s_lshl_b32 s51, s51, 4           ; sign*16
            s_lshl_b32 s53, s52, 7
            s_add_u32 s53, s53, s51
            s_add_u32 s53, s53, {WS_PARTZ}
            s_lshl_b32 s52, s52, 11
            s_add_u32 s52, s52, s51
            s_add_u32 s52, s52, {WS_PART}
            v_lshlrev_b32 v4, 5, v1
            v_lshlrev_b32 v5, 5, v3
            v_cmp_eq_u32 s[62:63], 0, v2
            """)
            softmax_units(a, units, "s55")
            for u in units:
                a(f"buffer_store_dwordx4 {vr(u['O'],4)}, v37, s[32:35], s61 offen offset:{u['hh']*1024} {STF}")
            stamp(a, 9)
            a("s_barrier")
            stamp(a, 10)
            for kk in range(4):
                fa, fb = 152 + 8 * kk, 156 + 8 * kk
                a(f"""
                ds_read_b64_tr_b16 {vr(fa,2)}, v8 offset:{kk*2048}
                ds_read_b64_tr_b16 {vr(fa+2,2)}, v8 offset:{kk*2048+256}
                ds_read_b64_tr_b16 {vr(fb,2)}, v9 offset:{kk*1024}
                ds_read_b64_tr_b16 {vr(fb+2,2)}, v9 offset:{kk*1024+128}
                """)
            a("s_waitcnt lgkmcnt(0)")
            for kk in range(4):
                fa, fb = 152 + 8 * kk, 156 + 8 * kk
                c0 = "0" if kk == 0 else "v[44:47]"
                c1 = "0" if kk == 0 else "v[48:51]"
                a(f"v_mfma_f32_16x16x32_bf16 v[44:47], {vr(fa,4)}, {vr(fb,4)}, {c0}")
                a(f"v_mfma_f32_16x16x32_bf16 v[48:51], {vr(fa,4)}, {vr(ONES,4)}, {c1}")
            a(f"""
            buffer_store_dwordx4 v[44:47], v4, s[32:35], s52 offen {STF}
            s_mov_b64 exec, s[62:63]
            buffer_store_dwordx4 v[48:51], v5, s[32:35], s53 offen {STF}
            s_mov_b64 exec, -1
            """)
        else:
            PK2 = 192

            def fold(t, mi, scaled):
                c = ACC + 8 * t + 4 * mi
                for r in range(4):
                    a(f"v_fma_f32 v{c+r}, v{20+mi}, v{CS+4*t+r}, v{c+r}")
                if scaled:
                    for r in range(4):
                        a(f"v_mul_f32 v{c+r}, v{c+r}, v{60+mi}")
                o = PK2 + (t * 2 + mi) * 2
                a(f"v_cvt_pk_bf16_f32 v{o}, v{c}, v{c+1}")
                a(f"v_cvt_pk_bf16_f32 v{o+1}, v{c+2}, v{c+3}")
            a(f"""
            s_lshl_b32 s50, s47, 5
            v_add_u32 v4, s50, v2
            v_lshlrev_b32 v5, 3, v3
            v_lshl_add_u32 v6, v4, 6, v5
            v_lshl_add_u32 v7, v4, 5, v5     ; V write: m*32 + 8g
            """)
            for hh in range(2):
                fold(hh, 1, False)
                a(f"ds_write_b64 v39, {vr(PK2 + (hh*2+1)*2, 2)} offset:{hh*512}")
            for t in (2, 3):
                for mi in range(2):
                    fold(t, mi, False)
            units = []
            for hh in range(2):
                for mi in range(2):
                    k = hh * 2 + mi
                    u = dict(P=ACC + 8 * (2 + hh) + 4 * mi, T=88 + 12 * k, O=216 + 4 * k, hh=hh, mi=mi, S=f"v{22+mi}")
                    o = PK2 + ((2 + hh) * 2 + mi) * 2
                    a(f"v_mfma_f32_16x16x16_bf16 {vr(u['P'],4)}, {vr(56+2*hh,2)}, {vr(o,2)}, 0")
                    units.append(u)
            for t in (4, 5):
                for mi in range(2):
                    fold(t, mi, True)
            for hh in range(2):
                for mi in range(2):
                    o = PK2 + ((4 + hh) * 2 + mi) * 2
                    a(f"ds_write_b64 v7, {vr(o,2)} offset:{VI + hh*4096 + mi*512}")
            a("s_waitcnt lgkmcnt(4)")
            a("s_barrier")
            softmax_units(a, units, "s55")
            for u in units:
                base = PKI + u['hh'] * 8192 + u['mi'] * 1024
                a(f"ds_write_b64 v6, {vr(u['O'],2)} offset:{base}")
                a(f"ds_write_b64 v6, {vr(u['O']+2,2)} offset:{base+32}")
            units = []
            for hh in range(2):
                fold(hh, 0, False)
            for hh in range(2):
                u = dict(P=ACC + 8 * hh, T=88 + 12 * hh, O=168 + 4 * hh, hh=hh, S="v22")
                a(f"v_mfma_f32_16x16x16_bf16 {vr(u['P'],4)}, {vr(56+2*hh,2)}, {vr(PK2 + hh*4,2)}, 0")
                units.append(u)
            a("s_waitcnt lgkmcnt(0)")
            stamp(a, 9)
            a("s_barrier")
            stamp(a, 10)
            softmax_units(a, units, "s55")
            for u in units:
                a(f"buffer_store_dwordx4 {vr(u['O'],4)}, v37, s[32:35], s60 offen offset:{u['hh']*1024} {STF}")
        stamp(a, 11)
        if PROF:
            a("s_waitcnt vmcnt(0)")
        stamp(a, 12)
        stamp(a, 15, True)
        stamp_flush(a, 0, 16)
        a("s_branch K1_END")

    q2 = q.copy()
    path(False, q)
    a("K1_HPATH:")
    a("s_nop 4")
    path(True, q2)
    a("K1_END:")
    a("s_endpgm")


K2_NS = 11
K2_KV = K2_NS * 8192
K2_LDS = K2_KV + 34816
K2_NA = 12
K2_NST = 36
KV_TRIES = int(os.environ.get('KV_TRIES', '200'))
P_KVW = int(os.environ.get('ATT0', '20')) - 6
P_KVL = P_KVW - 7


def gen_k2(a):
    a.raw(".globl k2_kernel\n.p2align 8\n.type k2_kernel,@function\nk2_kernel:")
    a(f"""
    s_cmp_ge_u32 s2, 256
    s_cbranch_scc1 K2_END
    s_load_dwordx2 s[4:5], s[0:1], 0
    s_load_dwordx2 s[6:7], s[0:1], 24
    s_load_dwordx4 s[8:11], s[0:1], 56
    s_load_dwordx2 s[12:13], s[0:1], 72
    s_load_dwordx2 s[16:17], s[0:1], 88
    """)
    stamp(a, 0)
    stamp(a, 14, True)
    a(f"""
    v_lshrrev_b32 v4, 6, v0
    v_and_b32 v1, 63, v0
    v_and_b32 v2, 15, v0
    v_bfe_u32 v3, v0, 4, 2
    v_readfirstlane_b32 s46, v4
    s_and_b32 s50, s2, 7             ; xcd
    s_lshr_b32 s51, s2, 3
    s_lshl_b32 s52, s50, 2
    s_and_b32 s53, s51, 3            ; mb_l
    s_add_u32 s60, s52, s53          ; mb
    s_lshr_b32 s61, s51, 2           ; nb
    s_mul_i32 s52, s53, 7
    s_mul_i32 s56, s61, 11
    s_add_u32 s52, s52, s56
    s_add_u32 s52, s52, s50          ; <= 21+77+7 = 105
    s_mul_i32 s56, s52, 147
    s_lshr_b32 s56, s56, 12
    s_mul_i32 s56, s56, 28
    s_sub_u32 s42, s52, s56
    s_and_b32 s42, s42, {int(os.environ.get("ROT2", "0"))}
    s_lshl_b32 s52, s53, 1
    s_add_u32 s52, s52, s61
    s_add_u32 s52, s52, s50
    s_and_b32 s43, s52, {int(os.environ.get("ROT3", "0"))}
    s_and_b32 s47, s46, 3            ; mt_l
    s_lshr_b32 s48, s46, 2           ; kh
    s_lshl_b32 s54, s46, 10          ; w*1024
    s_mov_b32 s55, {LOG2E}
    s_lshl_b32 s62, s60, 2
    s_add_u32 s62, s62, s47          ; mt
    s_movk_i32 s58, 4096
    """)
    a(f"""
    v_lshrrev_b32 v4, 3, v1
    s_lshl_b32 s50, s46, 3
    v_add_u32 v4, s50, v4
    v_and_b32 v5, 7, v1
    v_lshlrev_b32 v6, 1, v3
    v_xor_b32 v5, v5, v6
    v_lshlrev_b32 v5, 4, v5
    v_lshl_add_u32 v4, v4, 10, v5
    s_lshl_b32 s50, s61, 7
    v_add_u32 v10, s50, v4           ; vOffB
    v_lshlrev_b32 v17, 4, v1         ; lane*16
    s_mul_i32 s50, s62, 56
    s_add_u32 s50, s50, s48
    s_lshl_b32 s50, s50, 10
    v_add_u32 v11, s50, v17          ; vOffA (h)
    s_lshl_b32 s50, s62, 5
    s_lshl_b32 s51, s48, 1
    s_add_u32 s50, s50, s51
    s_lshl_b32 s50, s50, 10
    s_add_u32 s50, s50, {WS_PQ}
    v_add_u32 v12, s50, v17          ; vOffP
    """)
    a(f"""
    v_lshrrev_b32 v4, 2, v2
    v_lshl_add_u32 v4, v3, 2, v4
    s_lshl_b32 s50, s48, 5
    v_add_u32 v4, s50, v4
    v_lshrrev_b32 v5, 3, v2
    v_lshl_add_u32 v5, v3, 1, v5
    v_and_b32 v5, 3, v5
    v_lshlrev_b32 v5, 5, v5
    v_lshl_add_u32 v4, v4, 7, v5
    v_and_b32 v5, 3, v2
    v_lshl_add_u32 v13, v5, 3, v4
    v_xor_b32 v14, 32, v13
    v_xor_b32 v15, 64, v13
    v_xor_b32 v16, 96, v13
    v_add_u32 v236, 0x10000, v13
    v_add_u32 v237, 0x10000, v14
    v_add_u32 v238, 0x10000, v15
    v_add_u32 v239, 0x10000, v16
    """)
    a(f"""
    s_lshl_b32 s50, s2, 3
    s_add_u32 s50, s50, s46          ; slice
    s_sub_u32 s51, s50, 1024
    s_lshl_b32 s52, s50, 6
    s_add_u32 s52, s52, {WS_PART}
    s_and_b32 s53, s51, 63
    s_lshl_b32 s53, s53, 6
    s_add_u32 s53, s53, {WS_PARTZ}   ; z source
    s_cmp_lt_u32 s50, 1024
    s_cselect_b32 s52, s52, s53
    s_cselect_b32 s53, 16, 12
    v_lshrrev_b32 v4, 2, v1
    v_lshlrev_b32 v4, s53, v4
    v_and_b32 v5, 3, v1
    v_lshl_add_u32 v4, v5, 4, v4
    v_add_u32 v36, s52, v4
    s_lshl_b32 s52, s50, 5
    s_add_u32 s52, s52, {WS_KVF}
    v_lshlrev_b32 v5, 3, v5
    v_add_u32 v37, s52, v5
    s_lshl_b32 s50, s46, 12
    s_add_u32 s51, s50, {WS_KVF}
    v_add_u32 v38, s51, v17
    s_add_u32 s51, s50, {K2_KV}
    v_add_u32 v39, s51, v17
    s_lshl_b32 s50, s46, 8
    v_lshlrev_b32 v4, 2, v1
    v_add_u32 v4, s50, v4            ; w*256 + lane*4
    v_add_u32 v8, {WS_KVF + 32768}, v4
    v_add_u32 v9, {K2_KV + 32768}, v4
    s_lshl_b32 s50, s48, 11
    s_add_u32 s50, s50, {K2_KV}
    v_add_u32 v18, s50, v17
    s_lshl_b32 s50, s48, 7
    s_add_u32 s50, s50, {K2_KV + 32768}
    v_lshlrev_b32 v4, 4, v3
    v_add_u32 v19, s50, v4
    """)
    a(f"""
    v_lshrrev_b32 v4, 3, v0
    v_and_b32 v5, 7, v0
    s_lshl_b32 s50, s60, 6
    v_add_u32 v6, s50, v4
    v_lshlrev_b32 v6, 10, v6
    v_lshlrev_b32 v7, 4, v5
    s_lshl_b32 s50, s61, 7
    v_add_u32 v7, s50, v7
    v_add_u32 v232, v6, v7
    v_mov_b32 v233, v7               ; b2 offset
    s_movk_i32 s50, 272
    v_mul_lo_u32 v6, v4, s50
    v_lshl_add_u32 v234, v5, 5, v6
    s_lshl_b32 s51, s47, 4
    v_add_u32 v6, s51, v2
    v_mul_lo_u32 v6, v6, s50
    v_lshl_add_u32 v6, v3, 4, v6
    s_mul_i32 s51, s48, {2*17408}
    v_add_u32 v235, s51, v6
    """)
    for r in range(136, 168):
        a(f"v_mov_b32 v{r}, 0")
    a("s_waitcnt lgkmcnt(0)")
    srd(a, 20, 4, 2048 * 1024)
    srd(a, 24, 6, 512 * 1024)
    srd(a, 28, 8, 1792 * 1024)
    srd(a, 32, 16, WS_SIZE)
    srd(a, 36, 10, 1024)
    srd(a, 64, 12, 2048 * 1024)
    q = VmQ(a)
    AR = 40
    NA = K2_NA
    BF = [88, 104, 120]
    KZ = [168, 184, 240]

    ATT0 = int(os.environ.get("ATT0", "20"))
    ORD = list(range(ATT0)) + list(range(28, 36)) + list(range(ATT0, 28))
    isatt = lambda p: ORD[p] >= 28

    def dma(s):
        slot = s % K2_NS
        sr = "s[28:31]" if not isatt(s) else "s[24:27]"
        so = (ORD[s] if not isatt(s) else ORD[s] - 28) * 65536
        if os.environ.get("K2NOB"):
            so = 0
        return f"s_mov_b32 s56, {so}\ns_add_u32 m0, s54, {slot*8192}\nbuffer_load_dwordx4 v10, {sr}, s56 offen lds"

    frags = []
    for s in range(36):
        frags.append((s, 0))
        if isatt(s):
            frags.append((s, 1))
    first_frag = {}
    for k, (s, e) in enumerate(frags):
        first_frag.setdefault(s, k)

    def aload(k):
        p, e = frags[k]
        s = ORD[p]
        r = AR + 4 * (k % NA)
        if os.environ.get("K2NOA"):
            return f"s_mov_b32 s57, 0\nbuffer_load_dwordx4 {vr(r,4)}, v11, s[32:35], s57 offen"
        if s < 28:
            return f"s_mov_b32 s57, {s*2048}\nbuffer_load_dwordx4 {vr(r,4)}, v11, s[32:35], s57 offen"
        return f"s_mov_b32 s57, {(s-28)*4096}\nbuffer_load_dwordx4 {vr(r,4)}, v12, s[32:35], s57 offen offset:{e*1024}"

    a("buffer_load_dwordx4 v[20:23], v36, s[32:35], 0 offen")
    q.issue("part")
    nextA = 0
    nextB = 0
    PRE = int(os.environ.get("PRE", "4"))
    for s in range(PRE):
        a(dma(s)); q.issue(("B", s)); nextB += 1
        a(aload(nextA)); q.issue(("A", nextA)); nextA += 1
    stamp(a, 1)
    q.wait(["part"])
    stamp(a, 2)
    for r in range(4):
        a(f"v_add_f32_dpp v{24+r}, v{20+r}, v{20+r} row_ror:8 row_mask:0xf bank_mask:0xf")
    for r in range(4):
        a(f"v_add_f32_dpp v{20+r}, v{24+r}, v{24+r} row_ror:4 row_mask:0xf bank_mask:0xf")
    for sw in ("v_permlane16_swap_b32", "v_permlane32_swap_b32"):
        for r in range(4):
            a(f"v_mov_b32 v{24+r}, v{20+r}")
        for r in range(4):
            a(f"{sw} v{20+r}, v{24+r}")
        for r in range(4):
            a(f"v_add_f32 v{20+r}, v{20+r}, v{24+r}")
    a("""
    v_cvt_pk_bf16_f32 v24, v20, v21
    v_cvt_pk_bf16_f32 v25, v22, v23
    v_min_u32 v24, 0xfffeffff, v24
    v_min_u32 v25, 0xfffeffff, v25
    s_mov_b64 exec, 15
    buffer_store_dwordx2 v[24:25], v37, s[32:35], 0 offen sc0 sc1
    s_mov_b64 exec, -1
    """)
    q.issue("kvst")

    def reads(s):
        slot = s % K2_NS
        f = BF[s % 3]
        r = []
        vb, off = (13, slot * 8192) if slot < 8 else (236, (slot - 8) * 8192)
        for t in range(4):
            r.append(f"ds_read_b64_tr_b16 {vr(f+4*t,2)}, v{vb+t} offset:{off}")
            r.append(f"ds_read_b64_tr_b16 {vr(f+4*t+2,2)}, v{vb+t} offset:{off+2048}")
        if isatt(s):
            kz = KZ[s % 3]
            hb = (ORD[s] - 28) * 4096
            r.append(f"ds_read_b128 {vr(kz,4)}, v18 offset:{hb}")
            r.append(f"ds_read_b128 {vr(kz+4,4)}, v19 offset:{hb//16}")
            r.append(f"ds_read_b128 {vr(kz+8,4)}, v18 offset:{hb+1024}")
            r.append(f"ds_read_b128 {vr(kz+12,4)}, v19 offset:{hb//16+64}")
        return r

    def kvloads():
        r = []
        for k in range(4):
            r.append(f"buffer_load_dwordx4 {vr(168+4*k,4)}, v38, s[32:35], 0 offen offset:{k*1024} sc1")
        r.append("buffer_load_dword v184, v8, s[32:35], 0 offen sc1")
        return r

    q.wait([("B", 1)])
    a("s_barrier")
    lds_out = []

    def lds_issue(tag, n):
        lds_out.extend([tag] * n)

    def lds_need(tags):
        idx = -1
        for i, t in enumerate(lds_out):
            if t in tags:
                idx = i
        if idx < 0:
            return None
        n = len(lds_out) - 1 - idx
        del lds_out[:idx + 1]
        return min(n, 15) if n <= 15 else None if False else min(n, 15)

    for s0 in (0, 1):
        rr = reads(s0)
        for r in rr:
            a(r)
        lds_issue(("r", s0), len(rr))
    for s in range(K2_NST):
        K2ST = (0, 4, 10, 16, 22, 28)
        if s in K2ST:
            stamp(a, 3 + K2ST.index(s))
        f = BF[s % 3]
        k0 = first_frag[s]
        nfr = 1 if not isatt(s) else 2
        tags = [("A", k0 + nfr - 1)]
        even = (s & 1) == 0
        if even:
            tags += [("B", x) for x in (s + 2, s + 3) if x < K2_NST]
        if s == P_KVW:
            tags.append("kvf")
        ltags = [("r", s)]
        if even:
            ltags.append("kvw")
        ln = lds_need(ltags)
        q.wait(tags, lgkm=ln)
        if s == P_KVW:
            a("s_mov_b32 s49, 0")
            a("K2_KVCHK:")
            a("v_max3_u32 v26, v168, v169, v184")
            for r in range(170, 184, 2):
                a(f"v_max3_u32 v26, v26, v{r}, v{r+1}")
            a(f"""
            v_cmp_eq_u32 vcc, -1, v26
            s_cbranch_vccz K2_KVOK
            s_add_u32 s49, s49, 1
            s_cmp_gt_u32 s49, {KV_TRIES}
            s_cbranch_scc1 K2_KVSELF
            s_sleep 4
            """)
            for x in kvloads():
                a(x)
            a("""
            s_waitcnt vmcnt(0)
            s_branch K2_KVCHK
            K2_KVSELF:
            """)
            a(f"""
            s_lshl_b32 s50, s46, 13
            s_add_u32 s50, s50, {WS_PART}
            v_lshlrev_b32 v26, 5, v1
            v_add_u32 v26, s50, v26
            """)
            for k in range(4):
                for r in range(8):
                    a(f"v_mov_b32 v{200+r}, 0")
                a(f"""
                s_mov_b32 s50, {k*2048}
                K2_KVS_{k}:
                buffer_load_dwordx4 v[208:211], v26, s[32:35], s50 offen
                buffer_load_dwordx4 v[212:215], v26, s[32:35], s50 offen offset:16
                s_waitcnt vmcnt(0)
                """)
                for r in range(8):
                    a(f"v_add_f32 v{200+r}, v{200+r}, v{208+r}")
                a(f"""
                s_add_u32 s50, s50, 65536
                s_cmp_lt_u32 s50, {16*65536}
                s_cbranch_scc1 K2_KVS_{k}
                """)
                for r in range(4):
                    a(f"v_cvt_pk_bf16_f32 v{168+4*k+r}, v{200+2*r}, v{201+2*r}")
            a(f"""
            s_lshl_b32 s50, s46, 9
            s_add_u32 s50, s50, {WS_PARTZ}
            v_lshlrev_b32 v26, 3, v1
            v_add_u32 v26, s50, v26
            v_mov_b32 v200, 0
            v_mov_b32 v201, 0
            s_mov_b32 s50, 0
            K2_KVS_Z:
            buffer_load_dwordx2 v[208:209], v26, s[32:35], s50 offen
            s_waitcnt vmcnt(0)
            v_add_f32 v200, v200, v208
            v_add_f32 v201, v201, v209
            s_add_u32 s50, s50, 4096
            s_cmp_lt_u32 s50, 65536
            s_cbranch_scc1 K2_KVS_Z
            v_cvt_pk_bf16_f32 v184, v200, v201
            """)
            a("K2_KVOK:")
            a("s_nop 1")
        if even:
            a("s_barrier")
        other = []
        if s + 2 < K2_NST:
            rr = reads(s + 2)
            other += rr
            lds_issue(("r", s + 2), len(rr))
        if s in (P_KVW, P_KVW + 1):
            for r in range(2 * (s - P_KVW), 2 * (s - P_KVW) + 2):
                other.append(f"ds_write_b128 v39, {vr(168+4*r,4)} offset:{r*1024}")
                lds_issue("kvw", 1)
            if s == P_KVW:
                other.append("ds_write_b32 v9, v184")
                lds_issue("kvw", 1)
        if s == P_KVL:
            for x in kvloads():
                other.append(x)
                q.issue("kvf")
        if s == 6:
            other.append("buffer_load_dwordx4 v[28:31], v232, s[20:23], 0 offen")
            q.issue("x")
            other.append("buffer_load_dwordx4 v[32:35], v233, s[36:39], 0 offen")
            q.issue("b2")
        lim = (s if even else s - 1) + K2_NS
        for rep in range(3):
            if nextB < K2_NST and nextB <= lim:
                other.append(dma(nextB)); q.issue(("B", nextB)); nextB += 1
            if nextA < len(frags) and nextA - NA < k0:
                other.append(aload(nextA)); q.issue(("A", nextA)); nextA += 1
        if not isatt(s):
            ar = AR + 4 * (k0 % NA)
            mf = [f"v_mfma_f32_16x16x32_bf16 {vr(136+4*t,4)}, {vr(f+4*t,4)}, {vr(ar,4)}, {vr(136+4*t,4)}" for t in range(4)]
            for x in merge(mf, other):
                a(x)
        else:
            kz = KZ[s % 3]
            p0 = AR + 4 * (k0 % NA)
            p1 = AR + 4 * ((k0 + 1) % NA)
            mf = [
                f"v_mfma_f32_16x16x32_bf16 v[200:203], {vr(kz,4)}, {vr(p0,4)}, 0",
                f"v_mfma_f32_16x16x32_bf16 v[204:207], {vr(kz+4,4)}, {vr(p0,4)}, 0",
                f"v_mfma_f32_16x16x32_bf16 v[208:211], {vr(kz+8,4)}, {vr(p1,4)}, 0",
                f"v_mfma_f32_16x16x32_bf16 v[212:215], {vr(kz+12,4)}, {vr(p1,4)}, 0",
            ]
            for x in merge(mf, other):
                a(x)
            a("""
            v_add_f32 v220, 0x358637bd, v204
            v_add_f32 v221, 0x358637bd, v212
            v_rcp_f32 v220, v220
            v_rcp_f32 v221, v221
            """)
            for r in range(4):
                a(f"v_mul_f32 v{200+r}, v{200+r}, v220")
            for r in range(4):
                a(f"v_mul_f32 v{208+r}, v{208+r}, v221")
            a("""
            v_cvt_pk_bf16_f32 v216, v200, v201
            v_cvt_pk_bf16_f32 v217, v202, v203
            v_cvt_pk_bf16_f32 v218, v208, v209
            v_cvt_pk_bf16_f32 v219, v210, v211
            """)
            for t in range(4):
                a(f"v_mfma_f32_16x16x32_bf16 {vr(152+4*t,4)}, {vr(f+4*t,4)}, v[216:219], {vr(152+4*t,4)}")
    stamp(a, 11)
    a("s_barrier")
    for t in range(4):
        a(f"ds_write_b128 v235, {vr(136+4*t,4)} offset:{64*t}")
        a(f"ds_write_b128 v235, {vr(152+4*t,4)} offset:{17408+64*t}")
    a("s_waitcnt lgkmcnt(0)")
    a("s_barrier")
    for arr in range(4):
        a(f"ds_read_b128 {vr(40+8*arr,4)}, v234 offset:{arr*17408}")
        a(f"ds_read_b128 {vr(44+8*arr,4)}, v234 offset:{arr*17408+16}")
    q.wait(["x", "b2"], lgkm=0)
    for j in range(4):
        a(f"""
        v_lshlrev_b32 v{72+2*j}, 16, v{32+j}
        v_and_b32 v{73+2*j}, 0xffff0000, v{32+j}
        v_lshlrev_b32 v{80+2*j}, 16, v{28+j}
        v_and_b32 v{81+2*j}, 0xffff0000, v{28+j}
        """)
    for e in range(8):
        a(f"v_add_f32 v{40+e}, v{40+e}, v{56+e}")
    for e in range(8):
        a(f"v_add_f32 v{48+e}, v{48+e}, v{64+e}")
    for e in range(8):
        a(f"v_add_f32 v{40+e}, v{40+e}, v{72+e}")
    for e in range(8):
        a(f"v_mul_f32_e64 v{88+e}, -v{40+e}, s55")
    for e in range(8):
        a(f"v_exp_f32 v{88+e}, v{88+e}")
    for e in range(8):
        a(f"v_add_f32 v{88+e}, 1.0, v{88+e}")
    for e in range(8):
        a(f"v_rcp_f32 v{88+e}, v{88+e}")
    for e in range(8):
        a(f"v_mul_f32 v{40+e}, v{40+e}, v{88+e}")
    for e in range(8):
        a(f"v_fma_f32 v{40+e}, v{40+e}, v{48+e}, v{80+e}")
    for j in range(4):
        a(f"v_cvt_pk_bf16_f32 v{96+j}, v{40+2*j}, v{41+2*j}")
    a("buffer_store_dwordx4 v[96:99], v232, s[64:67], 0 offen")
    stamp(a, 12)
    if PROF:
        a("s_waitcnt vmcnt(0)")
    stamp(a, 13)
    stamp(a, 15, True)
    stamp_flush(a, 1, 16)
    a("K2_END:")
    a("s_endpgm")
    a("CODE_END:")


def kd(name, nv):
    return f""".p2align 6
.amdhsa_kernel {name}
  .amdhsa_next_free_vgpr {nv}
  .amdhsa_next_free_sgpr 102
  .amdhsa_accum_offset {nv}
  .amdhsa_group_segment_fixed_size 0
  .amdhsa_kernarg_size 96
  .amdhsa_user_sgpr_count 2
  .amdhsa_user_sgpr_kernarg_segment_ptr 1
  .amdhsa_system_sgpr_workgroup_id_x 1
.end_amdhsa_kernel
"""


def main(out):
    a = Asm()
    a.raw(f"""; Two-launch implementation (generated by exp/gen.py; hand-designed assembly).
; @launch kernel=k1_kernel grid=(256,1,1) block=(512,1,1) lds={K1_LDS}
; @launch kernel=k2_kernel grid=(256,1,1) block=(512,1,1) lds={K2_LDS}
.amdgcn_target "amdgcn-amd-amdhsa--gfx950"
.text""")
    gen_k1(a)
    gen_k2(a)
    a.raw('.section .rodata,"a"\n' + kd("k1_kernel", 256) + kd("k2_kernel", 256))
    txt = a.finish()
    open(out, "w").write(txt)
    print("wrote", out, "lines", txt.count("\n"), "pads", a.npad)


if __name__ == "__main__":
    main(sys.argv[1] if len(sys.argv) > 1 else f"cdna_kernels/{NAME}.s")
```

```python
import sys
sys.path.insert(0, "exp")
from asmlib import Asm, VmQ, merge

NAME = "recurrent_scan__linear_kernel_hedgehog__dense_activation_squared_relu__prompt"

WS_H = 0
WS_PQ = 8 << 20
WS_PART = 12 << 20
WS_PARTZ = 13 << 20
WS_KVF = 14 << 20
WS_SIZE = 16 << 20

LOG2E = "0x3fb8aa3b"


def srd(a, d, lo, nbytes):
    a(f"""
    s_mov_b32 s{d}, s{lo}
    s_and_b32 s{d+1}, s{lo+1}, 0xffff
    s_mov_b32 s{d+2}, {nbytes}
    s_mov_b32 s{d+3}, 0x20000
    """)


import os
PROF = os.environ.get("PROF", "") != ""
PF1 = os.environ.get("PF1", "0") == "1"
PFR = os.environ.get("PFR", "1") == "1"
CODEPF = os.environ.get("CODEPF", "1") == "1"
PF2 = os.environ.get("PF2", "1") == "1"
PFW = os.environ.get("PFW", "1") == "1"
STF = os.environ.get("STF", "sc0 sc1")
WS_PROF = 15 << 20


STAMP_SLOT = {k: i for i, k in enumerate(eval(os.environ.get('SLOTS', '[0, 1, 2, 3, 4, 5, 6, 7, 8, 11, 12]')))}


def stamp(a, idx, clk=False):
    if PROF:
        if idx in STAMP_SLOT:
            b = 80 + 2 * STAMP_SLOT[idx]
            a(f"{'s_memtime' if clk else 's_memrealtime'} s[{b}:{b+1}]")


def stamp_flush(a, kern, n, vt=250):
    if not PROF:
        return
    a("s_waitcnt lgkmcnt(0)")
    a(f"""
    s_lshl_b32 s49, s2, 3
    s_add_u32 s49, s49, s46
    s_lshl_b32 s49, s49, 6
    s_add_u32 s49, s49, {WS_PROF + kern*131072}
    v_mov_b32 v{vt}, 0
    s_mov_b64 exec, 1
    """)
    for i in range(n):
        if i not in STAMP_SLOT:
            continue
        a(f"v_mov_b32 v{vt+1}, s{80+2*STAMP_SLOT[i]}")
        a(f"buffer_store_dword v{vt+1}, v{vt}, s[32:35], s49 offen offset:{4*i}")
        a("s_nop 1")
    a("s_mov_b64 exec, -1")


def vr(b, n):
    return f"v[{b}:{b+n-1}]"


def softmax_units(a, units, sl2e):
    def each(f):
        for u in units:
            a(f(u))
    P = lambda u, r: f"v{u['P']+r}"
    T = lambda u, r: f"v{u['T']+r}"
    each(lambda u: f"v_max3_f32 {T(u,8)}, {P(u,0)}, {P(u,1)}, {P(u,2)}")
    each(lambda u: f"v_max3_f32 {T(u,9)}, -{P(u,0)}, -{P(u,1)}, -{P(u,2)}")
    each(lambda u: f"v_max_f32 {T(u,8)}, {T(u,8)}, {P(u,3)}")
    each(lambda u: f"v_max_f32_e64 {T(u,9)}, {T(u,9)}, -{P(u,3)}")

    def allreduce(op):
        each(lambda u: f"v_permlane32_swap_b32 {T(u,8)}, {T(u,9)}")
        each(lambda u: f"{op} {T(u,10)}, {T(u,8)}, {T(u,9)}")
        each(lambda u: f"v_mov_b32 {T(u,11)}, {T(u,10)}")
        each(lambda u: f"v_permlane16_swap_b32 {T(u,10)}, {T(u,11)}")
        each(lambda u: f"{op} {T(u,8)}, {T(u,10)}, {T(u,11)}")
        each(lambda u: f"v_mov_b32 {T(u,9)}, {T(u,8)}")
        each(lambda u: f"v_permlane32_swap_b32 {T(u,8)}, {T(u,9)}")
    allreduce("v_max_f32")
    S = lambda u: u.get('S', sl2e)
    each(lambda u: f"v_mul_f32 {T(u,8)}, {S(u)}, {T(u,8)}")
    each(lambda u: f"v_mul_f32 {T(u,9)}, {S(u)}, {T(u,9)}")
    for r in range(4):
        each(lambda u: f"v_fma_f32 {T(u,r)}, {P(u,r)}, {S(u)}, -{T(u,8)}")
        each(lambda u: f"v_fma_f32 {T(u,4+r)}, -{P(u,r)}, {S(u)}, -{T(u,9)}")
    for r in range(8):
        each(lambda u: f"v_exp_f32 {T(u,r)}, {T(u,r)}")
    each(lambda u: f"v_add_f32 {T(u,8)}, {T(u,0)}, {T(u,1)}")
    each(lambda u: f"v_add_f32 {T(u,9)}, {T(u,4)}, {T(u,5)}")
    each(lambda u: f"v_add_f32 {T(u,10)}, {T(u,2)}, {T(u,3)}")
    each(lambda u: f"v_add_f32 {T(u,11)}, {T(u,6)}, {T(u,7)}")
    each(lambda u: f"v_add_f32 {T(u,8)}, {T(u,8)}, {T(u,10)}")
    each(lambda u: f"v_add_f32 {T(u,9)}, {T(u,9)}, {T(u,11)}")
    allreduce("v_add_f32")
    each(lambda u: f"v_rcp_f32 {T(u,8)}, {T(u,8)}")
    each(lambda u: f"v_rcp_f32 {T(u,9)}, {T(u,9)}")
    for r in range(4):
        each(lambda u: f"v_mul_f32 {T(u,r)}, {T(u,r)}, {T(u,8)}")
        each(lambda u: f"v_mul_f32 {T(u,4+r)}, {T(u,4+r)}, {T(u,9)}")
    for r in range(4):
        each(lambda u: f"v_cvt_pk_bf16_f32 v{u['O']+r}, {T(u,2*r)}, {T(u,2*r+1)}")


K1_NS = 3
K1_A, K1_Q, K1_H = 0, 49152, 98304
K1_WPHI = 147456
K1_RS = 148480
K1_CS = K1_RS + 1024
K1_LDS = K1_CS + 4096


def gen_k1(a):
    a.raw(".globl k1_kernel\n.p2align 8\n.type k1_kernel,@function\nk1_kernel:")
    a(f"""
    s_cmp_ge_u32 s2, 256
    s_cbranch_scc1 K1_END
    s_load_dwordx4 s[4:7], s[0:1], 0
    s_load_dwordx4 s[8:11], s[0:1], 16
    s_load_dwordx4 s[12:15], s[0:1], 40
    s_load_dwordx2 s[16:17], s[0:1], 88
    s_load_dwordx2 s[18:19], s[0:1], 56
    """)
    if CODEPF:
        a(f"""
        s_getpc_b64 s[50:51]
        K1_PCREF:
        s_sub_u32 s50, s50, K1_PCREF-k1_kernel
        s_subb_u32 s51, s51, 0
        v_lshlrev_b32 v4, 7, v0
        v_min_u32 v4, CODE_END-k1_kernel-4, v4
        global_load_dword v255, v4, s[50:51]
        """)
    stamp(a, 0)
    stamp(a, 14, True)
    a(f"""
    v_lshrrev_b32 v4, 6, v0
    v_and_b32 v1, 63, v0
    v_and_b32 v2, 15, v0
    v_bfe_u32 v3, v0, 4, 2
    v_readfirstlane_b32 s46, v4
    s_and_b32 s50, s2, 7             ; xcd
    s_lshr_b32 s51, s2, 3            ; j
    s_and_b32 s52, s50, 1
    s_lshl_b32 s52, s52, 3
    s_and_b32 s53, s51, 7
    s_add_u32 s44, s52, s53          ; rb
    s_lshr_b32 s52, s50, 1
    s_lshl_b32 s52, s52, 2
    s_lshr_b32 s53, s51, 3
    s_add_u32 s45, s52, s53          ; cb
    s_and_b32 s43, s45, 1            ; par
    s_and_b32 s47, s46, 3            ; rg
    s_lshr_b32 s48, s46, 2           ; role
    s_mov_b32 s55, {LOG2E}
    v_lshlrev_b32 v37, 4, v1         ; lane*16
    s_lshl_b32 s54, s46, 11
    """)
    a(f"""
    s_lshl_b32 s50, s44, 7
    s_lshl_b32 s51, s46, 4
    s_add_u32 s50, s50, s51
    v_lshrrev_b32 v4, 3, v1
    v_add_u32 v4, s50, v4
    v_lshlrev_b32 v4, 10, v4
    v_and_b32 v5, 7, v1
    v_xor_b32 v6, v5, v3
    v_lshl_add_u32 v10, v6, 4, v4
    v_xor_b32 v6, 4, v6
    v_lshl_add_u32 v11, v6, 4, v4
    v_add_u32 v11, 0x2000, v11
    """)
    a(f"""
    s_and_b32 s50, s46, 1
    s_lshl_b32 s50, s50, 2
    v_or_b32 v4, s50, v3
    v_lshlrev_b32 v4, 1, v4
    v_xor_b32 v4, v4, v2             ; u
    s_lshl_b32 s51, s46, 3
    v_add_u32 v5, s51, v3            ; row (e=0)
    v_lshrrev_b32 v6, 2, v4
    v_min_u32 v6, 2, v6              ; seg
    v_and_b32 v7, 3, v4
    v_lshlrev_b32 v6, 10, v6
    v_lshl_add_u32 v6, v7, 4, v6
    v_mul_u32_u24 v7, 3072, v5
    s_lshl_b32 s51, s45, 6
    v_add3_u32 v12, v6, v7, s51
    v_add_u32 v13, {4*3072}, v12
    v_min_u32 v6, 13, v4
    s_lshl_b32 s50, s43, 1
    v_add_u32 v6, s50, v6
    v_subrev_u32 v7, 14, v6
    v_min_u32 v6, v6, v7
    v_mul_u32_u24 v7, 3584, v5
    s_mul_i32 s51, s45, 224
    v_lshl_add_u32 v6, v6, 4, v7
    v_add_u32 v14, s51, v6
    v_add_u32 v15, {4*3584}, v14
    """)
    if PFR:
        a(f"""
        s_and_b32 s50, s2, 7
        s_lshr_b32 s51, s2, 3            ; j
        s_and_b32 s52, s50, 1
        s_lshl_b32 s52, s52, 10
        s_lshl_b32 s53, s51, 5
        s_add_u32 s52, s52, s53
        s_lshr_b32 s53, s47, 1
        s_lshl_b32 s53, s53, 4
        s_add_u32 s52, s52, s53
        v_add_u32 v4, s52, v2
        v_lshlrev_b32 v4, 10, v4         ; x variant
        s_lshr_b32 s50, s50, 1           ; xcd>>1
        v_lshrrev_b32 v5, 3, v2
        s_lshl_b32 s52, s51, 1
        v_add_u32 v5, s52, v5
        v_and_b32 v6, 7, v2
        v_min_u32 v7, 5, v6
        v_lshrrev_b32 v8, 1, v7
        v_and_b32 v7, 1, v7
        v_lshlrev_b32 v8, 10, v8
        v_lshl_add_u32 v8, v7, 7, v8
        v_mul_u32_u24 v7, 3072, v5
        s_lshl_b32 s52, s50, 8
        v_add3_u32 v7, v7, v8, s52
        v_min_u32 v6, 6, v6
        v_mul_u32_u24 v8, 3584, v5
        v_lshl_add_u32 v8, v6, 7, v8
        s_mul_i32 s52, s50, 896
        v_add_u32 v8, s52, v8            ; w1 variant
        s_cmp_eq_u32 s47, 1
        s_cselect_b64 s[52:53], -1, 0
        s_cmp_eq_u32 s47, 2
        s_cselect_b64 s[50:51], -1, 0
        v_cndmask_b32 v4, v4, v7, s[52:53]
        v_cndmask_b32 v254, v4, v8, s[50:51]
        s_movk_i32 s62, 128
        s_cmp_eq_u32 s47, 1
        s_cselect_b32 s62, {64*3072}, s62
        s_cmp_eq_u32 s47, 2
        s_cselect_b32 s62, {64*3584}, s62
        s_mul_i32 s63, s62, s48
        """)
    a("s_waitcnt lgkmcnt(0)")
    srd(a, 20, 4, 2048 * 1024)
    srd(a, 24, 6, 512 * 3072)
    srd(a, 28, 12, 512 * 3584)
    q = VmQ(a)
    if CODEPF:
        q.issue("cpf")
    if PFR:
        a(f"""
        s_cmp_eq_u32 s47, 1
        s_cselect_b32 s76, s24, s20
        s_cselect_b32 s77, s25, s21
        s_cselect_b32 s78, s26, s22
        s_cmp_eq_u32 s47, 2
        s_cselect_b32 s76, s28, s76
        s_cselect_b32 s77, s29, s77
        s_cselect_b32 s78, s30, s78
        s_mov_b32 s79, 0x20000
        buffer_load_dword v255, v254, s[76:79], s63 offen
        """)
        q.issue("pf")

    def dma(s):
        slot = s % K1_NS
        o = slot * 16384
        return [
            f"s_movk_i32 s57, {s*128}\ns_add_u32 m0, s54, {K1_A + o}\nbuffer_load_dwordx4 v10, s[20:23], s57 offen lds",
            f"s_add_u32 m0, s54, {K1_A + o + 1024}\nbuffer_load_dwordx4 v11, s[20:23], s57 offen lds",
            f"s_mov_b32 s58, {s*64*3072}\ns_add_u32 m0, s54, {K1_Q + o}\nbuffer_load_dwordx4 v12, s[24:27], s58 offen lds",
            f"s_add_u32 m0, s54, {K1_Q + o + 1024}\nbuffer_load_dwordx4 v13, s[24:27], s58 offen lds",
            f"s_mov_b32 s59, {s*64*3584}\ns_add_u32 m0, s54, {K1_H + o}\nbuffer_load_dwordx4 v14, s[28:31], s59 offen lds",
            f"s_add_u32 m0, s54, {K1_H + o + 1024}\nbuffer_load_dwordx4 v15, s[28:31], s59 offen lds",
        ]

    for s in range(2):
        for d in dma(s):
            a(d)
            q.issue(("st", s))
        if s == 0 and os.environ.get("PBAR", "1") == "1":
            a("s_barrier")
    srd(a, 32, 16, WS_SIZE)
    srd(a, 36, 14, 3584)
    srd(a, 64, 8, 16384)
    if PFW:
        srd(a, 68, 18, 1792 * 1024)
        srd(a, 72, 10, 512 * 1024)
    a(f"""
    s_mov_b32 m0, {K1_WPHI}
    s_lshl_b32 s51, s45, 10
    buffer_load_dwordx4 v37, s[64:67], s51 offen lds
    s_lshl_b32 s50, s2, 8
    s_add_u32 s50, s50, {WS_KVF}
    v_lshlrev_b32 v4, 2, v1
    v_mov_b32 v5, -1
    buffer_store_dword v5, v4, s[32:35], s50 offen
    """)
    q.issue("wphi")
    q.issue("sent")
    stamp(a, 1)
    FS = [64, 100]
    ACC = 136
    RSUM, RSQ, CSA = 192, 196, 200
    ONES = 228
    a(f"""
    v_lshrrev_b32 v4, 1, v2
    v_xor_b32 v4, v4, v3
    v_lshlrev_b32 v4, 4, v4
    s_lshl_b32 s50, s47, 5
    s_lshl_b32 s51, s48, 4
    s_add_u32 s51, s51, s50
    v_add_u32 v5, s51, v2
    v_lshl_add_u32 v16, v5, 7, v4
    v_xor_b32 v17, 64, v16
    v_xor_b32 v18, 0x800, v16
    v_xor_b32 v19, 0x800, v17
    v_lshlrev_b32 v4, 3, v5
    v_add_u32 v33, {K1_RS}, v4
    v_xor_b32 v35, 0x80, v33
    s_lshl_b32 s50, s47, 6
    s_lshl_b32 s51, s48, 9
    s_add_u32 s51, s51, {K1_CS}
    s_add_u32 s50, s50, s51
    v_lshlrev_b32 v4, 4, v3
    v_add_u32 v34, s50, v4
    v_add_u32 v36, s51, v4
    v_lshrrev_b32 v4, 2, v2
    v_and_b32 v5, 1, v3
    v_lshl_or_b32 v5, v5, 2, v4
    v_lshlrev_b32 v5, 5, v5
    v_lshl_add_u32 v6, v3, 3, v4     ; row = 8g + (i>>2)
    v_lshl_add_u32 v5, v6, 8, v5
    v_and_b32 v6, 3, v2
    v_lshl_add_u32 v5, v6, 3, v5
    s_mul_i32 s50, s48, {K1_H - K1_Q}
    s_add_u32 s50, s50, {K1_Q}
    v_add_u32 v232, s50, v5
    """)
    for t in range(1, 7):
        a(f"v_xor_b32 v{232+t}, {t << 5}, v232")
    for r in range(ACC, ONES):
        a(f"v_mov_b32 v{r}, 0")
    for r in range(4):
        a(f"v_mov_b32 v{ONES+r}, 0x3f803f80")
    a(f"""
    v_lshl_add_u32 v8, v3, 2, 0
    v_lshrrev_b32 v9, 2, v2
    v_add_u32 v8, v8, v9
    v_lshlrev_b32 v8, 5, v8
    v_and_b32 v9, 3, v2
    v_lshl_add_u32 v8, v9, 3, v8
    v_add_u32 v38, {K1_WPHI}, v8
    s_lshl_b32 s42, s44, 3
    s_lshl_b32 s50, s47, 1
    s_add_u32 s42, s42, s50
    """)
    a("s_cmp_eq_u32 s48, 1")
    a("s_cbranch_scc1 K1_HPATH")

    def k1_pf(sfx):
        return (f"""
        s_and_b32 s50, s2, 7
        s_lshr_b32 s51, s2, 3            ; j
        s_cmp_ge_u32 s46, 4
        s_cbranch_scc1 K1_PF_W{sfx}
        s_and_b32 s40, s50, 1
        s_lshl_b32 s40, s40, 20
        s_lshl_b32 s41, s51, 15
        s_add_u32 s40, s40, s41
        s_lshl_b32 s41, s46, 13
        s_add_u32 s40, s40, s41
        v_lshlrev_b32 v4, 7, v1
        buffer_load_dword v255, v4, s[20:23], s40 offen
        s_branch K1_PF_E{sfx}
        K1_PF_W{sfx}:
        s_and_b32 s41, s46, 1
        s_lshl_b32 s41, s41, 3
        s_lshl_b32 s40, s51, 4
        s_add_u32 s40, s40, s41
        v_lshrrev_b32 v4, 3, v1
        v_add_u32 v4, s40, v4            ; row
        v_and_b32 v5, 7, v1
        s_lshr_b32 s50, s50, 1           ; xcd>>1
        s_cmp_ge_u32 s46, 6
        s_cbranch_scc1 K1_PF_H{sfx}
        v_min_u32 v5, 5, v5
        v_lshrrev_b32 v6, 1, v5
        v_and_b32 v5, 1, v5
        v_lshlrev_b32 v6, 10, v6
        v_lshl_add_u32 v6, v5, 7, v6
        s_movk_i32 s41, 3072
        v_mul_lo_u32 v4, v4, s41
        v_add_u32 v4, v4, v6
        s_lshl_b32 s50, s50, 8
        buffer_load_dword v255, v4, s[24:27], s50 offen
        s_branch K1_PF_E{sfx}
        K1_PF_H{sfx}:
        s_movk_i32 s41, 3584
        v_mul_lo_u32 v4, v4, s41
        v_lshl_add_u32 v4, v5, 7, v4
        s_mul_i32 s50, s50, 896
        buffer_load_dword v255, v4, s[28:31], s50 offen
        K1_PF_E{sfx}:
        """)

    PKI, VI, QXI = 0, 16384, 24576

    def path(H, q):
        nt = 7 if H else 6
        if H:
            a(f"""
            s_mul_i32 s50, s45, 224
            s_lshl_b32 s51, s43, 5
            s_add_u32 s51, s51, s50
            v_lshlrev_b32 v4, 3, v3
            v_add_u32 v5, s51, v4
            s_mul_i32 s51, s43, 192
            s_sub_u32 s51, 192, s51
            s_add_u32 s51, s51, s50
            v_add_u32 v6, s51, v4
            """)
            for t in range(6):
                a(f"buffer_load_dwordx2 {vr(40+2*t,2)}, v5, s[36:39], 0 offen offset:{32*t}")
                q.issue("bias")
            a(f"buffer_load_dwordx2 {vr(52,2)}, v6, s[36:39], 0 offen")
            q.issue("bias")

        def reads(s, kk):
            o = (s % K1_NS) * 16384
            f = FS[kk]
            r = []
            for mi in range(2):
                r.append(f"ds_read_b128 {vr(f+4*mi,4)}, v{16+kk+2*mi} offset:{o}")
            for t in range(nt):
                r.append(f"ds_read_b64_tr_b16 {vr(f+8+4*t,2)}, v{232+t} offset:{o + kk*8192}")
                r.append(f"ds_read_b64_tr_b16 {vr(f+8+4*t+2,2)}, v{232+t} offset:{o + kk*8192 + 1024}")
            return r

        def compute(s, kk, other):
            f = FS[kk]
            mf = []
            for t in range(nt):
                for mi in range(2):
                    c = ACC + 8 * t + 4 * mi
                    mf.append(f"v_mfma_f32_16x16x32_bf16 {vr(c,4)}, {vr(f+8+4*t,4)}, {vr(f+4*mi,4)}, {vr(c,4)}")
            st = [f"v_mfma_f32_16x16x32_bf16 {vr(RSUM,4)}, {vr(ONES,4)}, {vr(f,4)}, {vr(RSUM,4)}",
                  f"v_mfma_f32_16x16x32_bf16 {vr(RSQ,4)}, {vr(f,4)}, {vr(f,4)}, {vr(RSQ,4)}"]
            if (s, kk) == (7, 1):
                for x in st + mf[:6]:
                    a(x)
                a(f"""
                s_mov_b64 exec, s[60:61]
                ds_write_b128 v34, {vr(CSA,4)}
                ds_write_b128 v34, {vr(CSA+4,4)} offset:256
                s_mov_b64 exec, -1
                """)
                a(mf[6]); a(mf[7])
                a(f"""
                v_cndmask_b32 v7, v{RSQ}, v{RSQ+1}, s[40:41]
                v_cndmask_b32 v7, v7, v{RSQ+2}, s[50:51]
                v_cndmask_b32 v7, v7, v{RSQ+3}, s[56:57]
                v_mov_b32 v6, v{RSUM}
                s_mov_b64 exec, s[58:59]
                ds_write_b64 v33, v[6:7]
                s_mov_b64 exec, -1
                ds_read_b64_tr_b16 v[56:57], v38
                ds_read_b64_tr_b16 v[58:59], v38 offset:512
                s_nop 1
                """)
                for x in mf[8:]:
                    a(x)
                return
            mf += st
            for x in merge(mf, other, ratio=int(os.environ.get("RATIO", "2"))):
                a(x)

        def colsum(s):
            lab = f"K1_CS_{int(H)}_{s}"
            for v in range(4):
                if v < 3:
                    a(f"s_cmp_lg_u32 s47, {v}")
                    a(f"s_cbranch_scc1 {lab}_{v+1}")
                for kk in range(2):
                    f = FS[kk]
                    for t in (v, v + 4):
                        if t < nt:
                            c = CSA + 4 * (t >> 2)
                            a(f"v_mfma_f32_16x16x32_bf16 {vr(c,4)}, {vr(f+8+4*t,4)}, {vr(ONES,4)}, {vr(c,4)}")
                if v < 3:
                    a(f"s_branch {lab}_e")
                    a(f"{lab}_{v+1}:")
            a(f"{lab}_e:")

        def k1_pfw():
            lab = f"K1_PW_{int(H)}"
            return [f"""
                s_lshr_b32 s51, s2, 3
                v_lshlrev_b32 v4, 7, v1
                s_mul_i32 s40, s51, 57344
                s_lshl_b32 s41, s46, 13
                s_add_u32 s40, s40, s41
                s_lshl_b32 s41, s51, 14
                s_cmp_eq_u32 s46, 7
                s_cbranch_scc1 {lab}_o
                buffer_load_dword v255, v4, s[68:71], s40 offen
                s_branch {lab}_e
                {lab}_o:
                buffer_load_dword v255, v4, s[72:75], s41 offen
                {lab}_e:
                """, f"""
                s_add_u32 s41, s41, 8192
                buffer_load_dword v255, v4, s[72:75], s41 offen
                """]

        def touch(st):
            return f"s_mul_i32 s63, s62, {st}\nbuffer_load_dword v255, v254, s[76:79], s63 offen"
        PFD = int(os.environ.get("PFD", "4"))
        if PFR and not H:
            for st in range(2, PFD):
                a(touch(st))
                q.issue("pf")
        q.wait([("st", 0)])
        stamp(a, 2)
        a("s_barrier")
        for r in reads(0, 0):
            a(r)
        for s in range(8):
            if s in (1, 2, 4, 6) and not os.environ.get('SLOTS'):
                stamp(a, 3 + (1, 2, 4, 6).index(s))
            a("s_waitcnt lgkmcnt(0)")
            other = reads(s, 1)
            if s == 0:
                for d in dma(2):
                    other.append(d)
                    q.issue(("st", 2))
            if PFR and not H and s + PFD < 8:
                other.append(touch(s + PFD))
                q.issue("pf")
            if PF1 and s == int(os.environ.get("PF1S", "0")):
                other.append(k1_pf("h" if H else "q"))
                q.issue("pf")
            if PFW and s == int(os.environ.get("PFWS", "6")):
                for d in k1_pfw():
                    other.append(d)
                    q.issue("pfw")
            compute(s, 0, other)
            q.wait([("st", s + 1)] if s + 1 < 8 else [], lgkm=0)
            a("s_barrier")
            if s == 7:
                a(f"""
                v_and_b32 v4, 3, v2
                v_lshrrev_b32 v5, 2, v2
                v_cmp_eq_u32 s[40:41], 1, v4
                v_cmp_eq_u32 s[50:51], 2, v4
                v_cmp_eq_u32 s[56:57], 3, v4
                v_cmp_eq_u32 s[58:59], v5, v3
                v_cmp_eq_u32 s[60:61], 0, v2
                """)
            colsum(s)
            other = []
            if s + 1 < 8:
                other += reads(s + 1, 0)
            if s + K1_NS < 8:
                for d in dma(s + K1_NS):
                    other.append(d)
                    q.issue(("st", s + K1_NS))
            compute(s, 1, other)
        stamp(a, 7)
        a("""
        s_waitcnt lgkmcnt(0)
        s_barrier
        """)
        stamp(a, 8)
        CS = 64
        a("""
        ds_read_b64 v[4:5], v33
        ds_read_b64 v[6:7], v35
        """)
        for t in range(nt):
            a(f"ds_read_b128 {vr(CS+4*t,4)}, v36 offset:{64*t}")
        a(f"s_waitcnt lgkmcnt({nt})")
        a("""
        v_mul_f32 v4, 0x3b000000, v4
        v_mul_f32 v5, 0x3b000000, v5
        v_mul_f32 v6, 0x3b000000, v6
        v_mul_f32 v7, 0x3b000000, v7
        v_fma_f32 v5, -v4, v4, v5
        v_fma_f32 v7, -v6, v6, v7
        v_max_f32 v5, 0, v5
        v_max_f32 v7, 0, v7
        v_add_f32 v5, 0x3727c5ac, v5
        v_add_f32 v7, 0x3727c5ac, v7
        v_rsq_f32 v60, v5
        v_rsq_f32 v61, v7
        v_sub_f32 v20, 0, v4
        v_sub_f32 v21, 0, v6
        v_mul_f32 v62, v20, v60
        v_mul_f32 v63, v21, v61
        v_mul_f32 v22, s55, v60
        v_mul_f32 v23, s55, v61
        s_waitcnt lgkmcnt(0)
        """)
        a(f"""
        s_lshl_b32 s50, s42, 5
        s_lshl_b32 s51, s45, 1
        s_add_u32 s50, s50, s51
        s_lshl_b32 s50, s50, 10
        s_add_u32 s60, s50, {WS_PQ}
        s_add_u32 s61, s60, 32768
        s_lshl_b32 s50, s47, 10
        s_add_u32 s50, s50, {QXI}
        v_lshlrev_b32 v39, 3, v1
        v_add_u32 v39, s50, v39
        """)
        if H:
            q.wait(["bias"])
            BU = 100
            for t in range(7):
                a(f"""
                v_lshlrev_b32 v{BU+4*t}, 16, v{40+2*t}
                v_and_b32 v{BU+4*t+1}, 0xffff0000, v{40+2*t}
                v_lshlrev_b32 v{BU+4*t+2}, 16, v{41+2*t}
                v_and_b32 v{BU+4*t+3}, 0xffff0000, v{41+2*t}
                """)
            a(f"""
            s_lshr_b32 s50, s45, 1
            s_mul_i32 s50, s50, 7
            s_lshl_b32 s51, s43, 2
            s_add_u32 s51, s51, s50
            s_add_u32 s50, s50, 3
            s_lshl_b32 s51, s51, 10
            s_lshl_b32 s50, s50, 10
            s_lshl_b32 s52, s43, 3
            s_add_u32 s50, s50, s52
            s_mul_i32 s53, s42, {56*1024}
            s_add_u32 s52, s53, {56*1024}
            s_add_u32 s56, s51, s52
            s_add_u32 s57, s51, s53          ; mi=1
            s_add_u32 s58, s50, s52
            s_add_u32 s59, s50, s53
            """)
            OUT = 192

            def hepi(mi):
                for t in range(7):
                    c = ACC + 8 * t + 4 * mi
                    tmp = 128 + 4 * (t & 1)
                    for r in range(4):
                        a(f"v_fma_f32 v{tmp+r}, v{62+mi}, v{CS+4*t+r}, v{BU+4*t+r}")
                    for r in range(4):
                        a(f"v_fma_f32 v{c+r}, v{c+r}, v{60+mi}, v{tmp+r}")
                    for r in range(4):
                        a(f"v_max_f32 v{c+r}, 0, v{c+r}")
                    for r in range(4):
                        a(f"v_mul_f32 v{c+r}, v{c+r}, v{c+r}")
                    o = OUT + 16 * mi + 2 * t
                    a(f"v_cvt_pk_bf16_f32 v{o}, v{c}, v{c+1}")
                    a(f"v_cvt_pk_bf16_f32 v{o+1}, v{c+2}, v{c+3}")
                    if t in (1, 3, 5):
                        a(f"buffer_store_dwordx4 {vr(o-2,4)}, v37, s[32:35], s{56+mi} offen offset:{(t>>1)*1024} {STF}")
                    if t == 6:
                        a(f"buffer_store_dwordx2 {vr(o,2)}, v37, s[32:35], s{58+mi} offen {STF}")
            hepi(0)
            a("s_barrier")
            a("""
            ds_read_b64 v[24:25], v39
            ds_read_b64 v[26:27], v39 offset:512
            """)
            hepi(1)
            a("s_waitcnt lgkmcnt(0)")
            units = []
            for hh in range(2):
                u = dict(P=136 + 4 * hh, T=64 + 12 * hh, O=144 + 4 * hh, hh=hh, S="v22")
                a(f"v_mfma_f32_16x16x16_bf16 {vr(u['P'],4)}, {vr(56+2*hh,2)}, {vr(24+2*hh,2)}, 0")
                units.append(u)
            a(f"""
            s_lshr_b32 s50, s47, 1
            s_and_b32 s51, s47, 1
            v_lshrrev_b32 v4, 2, v2
            v_lshl_add_u32 v4, v3, 3, v4     ; row = 8g + (i>>2)
            v_and_b32 v5, 3, v2
            v_lshlrev_b32 v5, 3, v5
            v_lshl_add_u32 v8, v4, 6, v5
            s_lshl_b32 s52, s50, 13
            s_lshl_b32 s53, s51, 5
            s_add_u32 s52, s52, s53
            s_add_u32 s52, s52, {PKI}
            v_add_u32 v8, s52, v8
            v_lshl_add_u32 v9, v4, 5, v5
            s_lshl_b32 s52, s50, 12
            s_add_u32 s52, s52, {VI}
            v_add_u32 v9, s52, v9
            s_lshl_b32 s52, s44, 5
            s_lshl_b32 s53, s45, 1
            s_add_u32 s53, s53, s50          ; head
            s_add_u32 s52, s52, s53
            s_lshl_b32 s51, s51, 4           ; sign*16
            s_lshl_b32 s53, s52, 7
            s_add_u32 s53, s53, s51
            s_add_u32 s53, s53, {WS_PARTZ}
            s_lshl_b32 s52, s52, 11
            s_add_u32 s52, s52, s51
            s_add_u32 s52, s52, {WS_PART}
            v_lshlrev_b32 v4, 5, v1
            v_lshlrev_b32 v5, 5, v3
            v_cmp_eq_u32 s[62:63], 0, v2
            """)
            softmax_units(a, units, "s55")
            for u in units:
                a(f"buffer_store_dwordx4 {vr(u['O'],4)}, v37, s[32:35], s61 offen offset:{u['hh']*1024} {STF}")
            stamp(a, 9)
            a("s_barrier")
            stamp(a, 10)
            for kk in range(4):
                fa, fb = 152 + 8 * kk, 156 + 8 * kk
                a(f"""
                ds_read_b64_tr_b16 {vr(fa,2)}, v8 offset:{kk*2048}
                ds_read_b64_tr_b16 {vr(fa+2,2)}, v8 offset:{kk*2048+256}
                ds_read_b64_tr_b16 {vr(fb,2)}, v9 offset:{kk*1024}
                ds_read_b64_tr_b16 {vr(fb+2,2)}, v9 offset:{kk*1024+128}
                """)
            a("s_waitcnt lgkmcnt(0)")
            for kk in range(4):
                fa, fb = 152 + 8 * kk, 156 + 8 * kk
                c0 = "0" if kk == 0 else "v[44:47]"
                c1 = "0" if kk == 0 else "v[48:51]"
                a(f"v_mfma_f32_16x16x32_bf16 v[44:47], {vr(fa,4)}, {vr(fb,4)}, {c0}")
                a(f"v_mfma_f32_16x16x32_bf16 v[48:51], {vr(fa,4)}, {vr(ONES,4)}, {c1}")
            a(f"""
            buffer_store_dwordx4 v[44:47], v4, s[32:35], s52 offen {STF}
            s_mov_b64 exec, s[62:63]
            buffer_store_dwordx4 v[48:51], v5, s[32:35], s53 offen {STF}
            s_mov_b64 exec, -1
            """)
        else:
            PK2 = 192

            def fold(t, mi, scaled):
                c = ACC + 8 * t + 4 * mi
                for r in range(4):
                    a(f"v_fma_f32 v{c+r}, v{20+mi}, v{CS+4*t+r}, v{c+r}")
                if scaled:
                    for r in range(4):
                        a(f"v_mul_f32 v{c+r}, v{c+r}, v{60+mi}")
                o = PK2 + (t * 2 + mi) * 2
                a(f"v_cvt_pk_bf16_f32 v{o}, v{c}, v{c+1}")
                a(f"v_cvt_pk_bf16_f32 v{o+1}, v{c+2}, v{c+3}")
            a(f"""
            s_lshl_b32 s50, s47, 5
            v_add_u32 v4, s50, v2
            v_lshlrev_b32 v5, 3, v3
            v_lshl_add_u32 v6, v4, 6, v5
            v_lshl_add_u32 v7, v4, 5, v5     ; V write: m*32 + 8g
            """)
            for hh in range(2):
                fold(hh, 1, False)
                a(f"ds_write_b64 v39, {vr(PK2 + (hh*2+1)*2, 2)} offset:{hh*512}")
            for t in (2, 3):
                for mi in range(2):
                    fold(t, mi, False)
            units = []
            for hh in range(2):
                for mi in range(2):
                    k = hh * 2 + mi
                    u = dict(P=ACC + 8 * (2 + hh) + 4 * mi, T=88 + 12 * k, O=216 + 4 * k, hh=hh, mi=mi, S=f"v{22+mi}")
                    o = PK2 + ((2 + hh) * 2 + mi) * 2
                    a(f"v_mfma_f32_16x16x16_bf16 {vr(u['P'],4)}, {vr(56+2*hh,2)}, {vr(o,2)}, 0")
                    units.append(u)
            for t in (4, 5):
                for mi in range(2):
                    fold(t, mi, True)
            for hh in range(2):
                for mi in range(2):
                    o = PK2 + ((4 + hh) * 2 + mi) * 2
                    a(f"ds_write_b64 v7, {vr(o,2)} offset:{VI + hh*4096 + mi*512}")
            a("s_waitcnt lgkmcnt(4)")
            a("s_barrier")
            softmax_units(a, units, "s55")
            for u in units:
                base = PKI + u['hh'] * 8192 + u['mi'] * 1024
                a(f"ds_write_b64 v6, {vr(u['O'],2)} offset:{base}")
                a(f"ds_write_b64 v6, {vr(u['O']+2,2)} offset:{base+32}")
            units = []
            for hh in range(2):
                fold(hh, 0, False)
            for hh in range(2):
                u = dict(P=ACC + 8 * hh, T=88 + 12 * hh, O=168 + 4 * hh, hh=hh, S="v22")
                a(f"v_mfma_f32_16x16x16_bf16 {vr(u['P'],4)}, {vr(56+2*hh,2)}, {vr(PK2 + hh*4,2)}, 0")
                units.append(u)
            a("s_waitcnt lgkmcnt(0)")
            stamp(a, 9)
            a("s_barrier")
            stamp(a, 10)
            softmax_units(a, units, "s55")
            for u in units:
                a(f"buffer_store_dwordx4 {vr(u['O'],4)}, v37, s[32:35], s60 offen offset:{u['hh']*1024} {STF}")
        stamp(a, 11)
        if PROF:
            a("s_waitcnt vmcnt(0)")
        stamp(a, 12)
        stamp(a, 15, True)
        stamp_flush(a, 0, 16)
        a("s_branch K1_END")

    q2 = q.copy()
    path(False, q)
    a("K1_HPATH:")
    a("s_nop 4")
    path(True, q2)
    a("K1_END:")
    a("s_endpgm")


K2_NS = 11
K2_KV = K2_NS * 8192
K2_LDS = K2_KV + 34816
K2_NA = 12
K2_NST = 36
KV_TRIES = int(os.environ.get('KV_TRIES', '200'))
P_KVW = int(os.environ.get('ATT0', '20')) - 6
P_KVL = P_KVW - 7


def gen_k2(a):
    a.raw(".globl k2_kernel\n.p2align 8\n.type k2_kernel,@function\nk2_kernel:")
    a(f"""
    s_cmp_ge_u32 s2, 256
    s_cbranch_scc1 K2_END
    s_load_dwordx2 s[4:5], s[0:1], 0
    s_load_dwordx2 s[6:7], s[0:1], 24
    s_load_dwordx4 s[8:11], s[0:1], 56
    s_load_dwordx2 s[12:13], s[0:1], 72
    s_load_dwordx2 s[16:17], s[0:1], 88
    """)
    stamp(a, 0)
    stamp(a, 14, True)
    a(f"""
    v_lshrrev_b32 v4, 6, v0
    v_and_b32 v1, 63, v0
    v_and_b32 v2, 15, v0
    v_bfe_u32 v3, v0, 4, 2
    v_readfirstlane_b32 s46, v4
    s_and_b32 s50, s2, 7             ; xcd
    s_lshr_b32 s51, s2, 3
    s_lshl_b32 s52, s50, 2
    s_and_b32 s53, s51, 3            ; mb_l
    s_add_u32 s60, s52, s53          ; mb
    s_lshr_b32 s61, s51, 2           ; nb
    s_mul_i32 s52, s53, 7
    s_mul_i32 s56, s61, 11
    s_add_u32 s52, s52, s56
    s_add_u32 s52, s52, s50          ; <= 21+77+7 = 105
    s_mul_i32 s56, s52, 147
    s_lshr_b32 s56, s56, 12
    s_mul_i32 s56, s56, 28
    s_sub_u32 s42, s52, s56
    s_and_b32 s42, s42, {int(os.environ.get("ROT2", "0"))}
    s_lshl_b32 s52, s53, 1
    s_add_u32 s52, s52, s61
    s_add_u32 s52, s52, s50
    s_and_b32 s43, s52, {int(os.environ.get("ROT3", "0"))}
    s_and_b32 s47, s46, 3            ; mt_l
    s_lshr_b32 s48, s46, 2           ; kh
    s_lshl_b32 s54, s46, 10          ; w*1024
    s_mov_b32 s55, {LOG2E}
    s_lshl_b32 s62, s60, 2
    s_add_u32 s62, s62, s47          ; mt
    s_movk_i32 s58, 4096
    """)
    a(f"""
    v_lshrrev_b32 v4, 3, v1
    s_lshl_b32 s50, s46, 3
    v_add_u32 v4, s50, v4
    v_and_b32 v5, 7, v1
    v_lshlrev_b32 v6, 1, v3
    v_xor_b32 v5, v5, v6
    v_lshlrev_b32 v5, 4, v5
    v_lshl_add_u32 v4, v4, 10, v5
    s_lshl_b32 s50, s61, 7
    v_add_u32 v10, s50, v4           ; vOffB
    v_lshlrev_b32 v17, 4, v1         ; lane*16
    s_mul_i32 s50, s62, 56
    s_add_u32 s50, s50, s48
    s_lshl_b32 s50, s50, 10
    v_add_u32 v11, s50, v17          ; vOffA (h)
    s_lshl_b32 s50, s62, 5
    s_lshl_b32 s51, s48, 1
    s_add_u32 s50, s50, s51
    s_lshl_b32 s50, s50, 10
    s_add_u32 s50, s50, {WS_PQ}
    v_add_u32 v12, s50, v17          ; vOffP
    """)
    a(f"""
    v_lshrrev_b32 v4, 2, v2
    v_lshl_add_u32 v4, v3, 2, v4
    s_lshl_b32 s50, s48, 5
    v_add_u32 v4, s50, v4
    v_lshrrev_b32 v5, 3, v2
    v_lshl_add_u32 v5, v3, 1, v5
    v_and_b32 v5, 3, v5
    v_lshlrev_b32 v5, 5, v5
    v_lshl_add_u32 v4, v4, 7, v5
    v_and_b32 v5, 3, v2
    v_lshl_add_u32 v13, v5, 3, v4
    v_xor_b32 v14, 32, v13
    v_xor_b32 v15, 64, v13
    v_xor_b32 v16, 96, v13
    v_add_u32 v236, 0x10000, v13
    v_add_u32 v237, 0x10000, v14
    v_add_u32 v238, 0x10000, v15
    v_add_u32 v239, 0x10000, v16
    """)
    a(f"""
    s_lshl_b32 s50, s2, 3
    s_add_u32 s50, s50, s46          ; slice
    s_sub_u32 s51, s50, 1024
    s_lshl_b32 s52, s50, 6
    s_add_u32 s52, s52, {WS_PART}
    s_and_b32 s53, s51, 63
    s_lshl_b32 s53, s53, 6
    s_add_u32 s53, s53, {WS_PARTZ}   ; z source
    s_cmp_lt_u32 s50, 1024
    s_cselect_b32 s52, s52, s53
    s_cselect_b32 s53, 16, 12
    v_lshrrev_b32 v4, 2, v1
    v_lshlrev_b32 v4, s53, v4
    v_and_b32 v5, 3, v1
    v_lshl_add_u32 v4, v5, 4, v4
    v_add_u32 v36, s52, v4
    s_lshl_b32 s52, s50, 5
    s_add_u32 s52, s52, {WS_KVF}
    v_lshlrev_b32 v5, 3, v5
    v_add_u32 v37, s52, v5
    s_lshl_b32 s50, s46, 12
    s_add_u32 s51, s50, {WS_KVF}
    v_add_u32 v38, s51, v17
    s_add_u32 s51, s50, {K2_KV}
    v_add_u32 v39, s51, v17
    s_lshl_b32 s50, s46, 8
    v_lshlrev_b32 v4, 2, v1
    v_add_u32 v4, s50, v4            ; w*256 + lane*4
    v_add_u32 v8, {WS_KVF + 32768}, v4
    v_add_u32 v9, {K2_KV + 32768}, v4
    s_lshl_b32 s50, s48, 11
    s_add_u32 s50, s50, {K2_KV}
    v_add_u32 v18, s50, v17
    s_lshl_b32 s50, s48, 7
    s_add_u32 s50, s50, {K2_KV + 32768}
    v_lshlrev_b32 v4, 4, v3
    v_add_u32 v19, s50, v4
    """)
    a(f"""
    v_lshrrev_b32 v4, 3, v0
    v_and_b32 v5, 7, v0
    s_lshl_b32 s50, s60, 6
    v_add_u32 v6, s50, v4
    v_lshlrev_b32 v6, 10, v6
    v_lshlrev_b32 v7, 4, v5
    s_lshl_b32 s50, s61, 7
    v_add_u32 v7, s50, v7
    v_add_u32 v232, v6, v7
    v_mov_b32 v233, v7               ; b2 offset
    s_movk_i32 s50, 272
    v_mul_lo_u32 v6, v4, s50
    v_lshl_add_u32 v234, v5, 5, v6
    s_lshl_b32 s51, s47, 4
    v_add_u32 v6, s51, v2
    v_mul_lo_u32 v6, v6, s50
    v_lshl_add_u32 v6, v3, 4, v6
    s_mul_i32 s51, s48, {2*17408}
    v_add_u32 v235, s51, v6
    """)
    for r in range(136, 168):
        a(f"v_mov_b32 v{r}, 0")
    a("s_waitcnt lgkmcnt(0)")
    srd(a, 20, 4, 2048 * 1024)
    srd(a, 24, 6, 512 * 1024)
    srd(a, 28, 8, 1792 * 1024)
    srd(a, 32, 16, WS_SIZE)
    srd(a, 36, 10, 1024)
    srd(a, 64, 12, 2048 * 1024)
    q = VmQ(a)
    AR = 40
    NA = K2_NA
    BF = [88, 104, 120]
    KZ = [168, 184, 240]

    ATT0 = int(os.environ.get("ATT0", "20"))
    ORD = list(range(ATT0)) + list(range(28, 36)) + list(range(ATT0, 28))
    isatt = lambda p: ORD[p] >= 28

    def dma(s):
        slot = s % K2_NS
        sr = "s[28:31]" if not isatt(s) else "s[24:27]"
        so = (ORD[s] if not isatt(s) else ORD[s] - 28) * 65536
        if os.environ.get("K2NOB"):
            so = 0
        return f"s_mov_b32 s56, {so}\ns_add_u32 m0, s54, {slot*8192}\nbuffer_load_dwordx4 v10, {sr}, s56 offen lds"

    frags = []
    for s in range(36):
        frags.append((s, 0))
        if isatt(s):
            frags.append((s, 1))
    first_frag = {}
    for k, (s, e) in enumerate(frags):
        first_frag.setdefault(s, k)

    def aload(k):
        p, e = frags[k]
        s = ORD[p]
        r = AR + 4 * (k % NA)
        if os.environ.get("K2NOA"):
            return f"s_mov_b32 s57, 0\nbuffer_load_dwordx4 {vr(r,4)}, v11, s[32:35], s57 offen"
        if s < 28:
            return f"s_mov_b32 s57, {s*2048}\nbuffer_load_dwordx4 {vr(r,4)}, v11, s[32:35], s57 offen"
        return f"s_mov_b32 s57, {(s-28)*4096}\nbuffer_load_dwordx4 {vr(r,4)}, v12, s[32:35], s57 offen offset:{e*1024}"

    a("buffer_load_dwordx4 v[20:23], v36, s[32:35], 0 offen")
    q.issue("part")
    nextA = 0
    nextB = 0
    PRE = int(os.environ.get("PRE", "4"))
    for s in range(PRE):
        a(dma(s)); q.issue(("B", s)); nextB += 1
        a(aload(nextA)); q.issue(("A", nextA)); nextA += 1
    stamp(a, 1)
    q.wait(["part"])
    stamp(a, 2)
    for r in range(4):
        a(f"v_add_f32_dpp v{24+r}, v{20+r}, v{20+r} row_ror:8 row_mask:0xf bank_mask:0xf")
    for r in range(4):
        a(f"v_add_f32_dpp v{20+r}, v{24+r}, v{24+r} row_ror:4 row_mask:0xf bank_mask:0xf")
    for sw in ("v_permlane16_swap_b32", "v_permlane32_swap_b32"):
        for r in range(4):
            a(f"v_mov_b32 v{24+r}, v{20+r}")
        for r in range(4):
            a(f"{sw} v{20+r}, v{24+r}")
        for r in range(4):
            a(f"v_add_f32 v{20+r}, v{20+r}, v{24+r}")
    a("""
    v_cvt_pk_bf16_f32 v24, v20, v21
    v_cvt_pk_bf16_f32 v25, v22, v23
    v_min_u32 v24, 0xfffeffff, v24
    v_min_u32 v25, 0xfffeffff, v25
    s_mov_b64 exec, 15
    buffer_store_dwordx2 v[24:25], v37, s[32:35], 0 offen sc0 sc1
    s_mov_b64 exec, -1
    """)
    q.issue("kvst")

    def reads(s):
        slot = s % K2_NS
        f = BF[s % 3]
        r = []
        vb, off = (13, slot * 8192) if slot < 8 else (236, (slot - 8) * 8192)
        for t in range(4):
            r.append(f"ds_read_b64_tr_b16 {vr(f+4*t,2)}, v{vb+t} offset:{off}")
            r.append(f"ds_read_b64_tr_b16 {vr(f+4*t+2,2)}, v{vb+t} offset:{off+2048}")
        if isatt(s):
            kz = KZ[s % 3]
            hb = (ORD[s] - 28) * 4096
            r.append(f"ds_read_b128 {vr(kz,4)}, v18 offset:{hb}")
            r.append(f"ds_read_b128 {vr(kz+4,4)}, v19 offset:{hb//16}")
            r.append(f"ds_read_b128 {vr(kz+8,4)}, v18 offset:{hb+1024}")
            r.append(f"ds_read_b128 {vr(kz+12,4)}, v19 offset:{hb//16+64}")
        return r

    def kvloads():
        r = []
        for k in range(4):
            r.append(f"buffer_load_dwordx4 {vr(168+4*k,4)}, v38, s[32:35], 0 offen offset:{k*1024} sc1")
        r.append("buffer_load_dword v184, v8, s[32:35], 0 offen sc1")
        return r

    q.wait([("B", 1)])
    a("s_barrier")
    lds_out = []

    def lds_issue(tag, n):
        lds_out.extend([tag] * n)

    def lds_need(tags):
        idx = -1
        for i, t in enumerate(lds_out):
            if t in tags:
                idx = i
        if idx < 0:
            return None
        n = len(lds_out) - 1 - idx
        del lds_out[:idx + 1]
        return min(n, 15) if n <= 15 else None if False else min(n, 15)

    for s0 in (0, 1):
        rr = reads(s0)
        for r in rr:
            a(r)
        lds_issue(("r", s0), len(rr))
    for s in range(K2_NST):
        K2ST = (0, 4, 10, 16, 22, 28)
        if s in K2ST:
            stamp(a, 3 + K2ST.index(s))
        f = BF[s % 3]
        k0 = first_frag[s]
        nfr = 1 if not isatt(s) else 2
        tags = [("A", k0 + nfr - 1)]
        even = (s & 1) == 0
        if even:
            tags += [("B", x) for x in (s + 2, s + 3) if x < K2_NST]
        if s == P_KVW:
            tags.append("kvf")
        ltags = [("r", s)]
        if even:
            ltags.append("kvw")
        ln = lds_need(ltags)
        q.wait(tags, lgkm=ln)
        if s == P_KVW:
            a("s_mov_b32 s49, 0")
            a("K2_KVCHK:")
            a("v_max3_u32 v26, v168, v169, v184")
            for r in range(170, 184, 2):
                a(f"v_max3_u32 v26, v26, v{r}, v{r+1}")
            a(f"""
            v_cmp_eq_u32 vcc, -1, v26
            s_cbranch_vccz K2_KVOK
            s_add_u32 s49, s49, 1
            s_cmp_gt_u32 s49, {KV_TRIES}
            s_cbranch_scc1 K2_KVSELF
            s_sleep 4
            """)
            for x in kvloads():
                a(x)
            a("""
            s_waitcnt vmcnt(0)
            s_branch K2_KVCHK
            K2_KVSELF:
            """)
            a(f"""
            s_lshl_b32 s50, s46, 13
            s_add_u32 s50, s50, {WS_PART}
            v_lshlrev_b32 v26, 5, v1
            v_add_u32 v26, s50, v26
            """)
            for k in range(4):
                for r in range(8):
                    a(f"v_mov_b32 v{200+r}, 0")
                a(f"""
                s_mov_b32 s50, {k*2048}
                K2_KVS_{k}:
                buffer_load_dwordx4 v[208:211], v26, s[32:35], s50 offen
                buffer_load_dwordx4 v[212:215], v26, s[32:35], s50 offen offset:16
                s_waitcnt vmcnt(0)
                """)
                for r in range(8):
                    a(f"v_add_f32 v{200+r}, v{200+r}, v{208+r}")
                a(f"""
                s_add_u32 s50, s50, 65536
                s_cmp_lt_u32 s50, {16*65536}
                s_cbranch_scc1 K2_KVS_{k}
                """)
                for r in range(4):
                    a(f"v_cvt_pk_bf16_f32 v{168+4*k+r}, v{200+2*r}, v{201+2*r}")
            a(f"""
            s_lshl_b32 s50, s46, 9
            s_add_u32 s50, s50, {WS_PARTZ}
            v_lshlrev_b32 v26, 3, v1
            v_add_u32 v26, s50, v26
            v_mov_b32 v200, 0
            v_mov_b32 v201, 0
            s_mov_b32 s50, 0
            K2_KVS_Z:
            buffer_load_dwordx2 v[208:209], v26, s[32:35], s50 offen
            s_waitcnt vmcnt(0)
            v_add_f32 v200, v200, v208
            v_add_f32 v201, v201, v209
            s_add_u32 s50, s50, 4096
            s_cmp_lt_u32 s50, 65536
            s_cbranch_scc1 K2_KVS_Z
            v_cvt_pk_bf16_f32 v184, v200, v201
            """)
            a("K2_KVOK:")
            a("s_nop 1")
        if even:
            a("s_barrier")
        other = []
        if s + 2 < K2_NST:
            rr = reads(s + 2)
            other += rr
            lds_issue(("r", s + 2), len(rr))
        if s in (P_KVW, P_KVW + 1):
            for r in range(2 * (s - P_KVW), 2 * (s - P_KVW) + 2):
                other.append(f"ds_write_b128 v39, {vr(168+4*r,4)} offset:{r*1024}")
                lds_issue("kvw", 1)
            if s == P_KVW:
                other.append("ds_write_b32 v9, v184")
                lds_issue("kvw", 1)
        if s == P_KVL:
            for x in kvloads():
                other.append(x)
                q.issue("kvf")
        if s == 6:
            other.append("buffer_load_dwordx4 v[28:31], v232, s[20:23], 0 offen")
            q.issue("x")
            other.append("buffer_load_dwordx4 v[32:35], v233, s[36:39], 0 offen")
            q.issue("b2")
        lim = (s if even else s - 1) + K2_NS
        for rep in range(3):
            if nextB < K2_NST and nextB <= lim:
                other.append(dma(nextB)); q.issue(("B", nextB)); nextB += 1
            if nextA < len(frags) and nextA - NA < k0:
                other.append(aload(nextA)); q.issue(("A", nextA)); nextA += 1
        if not isatt(s):
            ar = AR + 4 * (k0 % NA)
            mf = [f"v_mfma_f32_16x16x32_bf16 {vr(136+4*t,4)}, {vr(f+4*t,4)}, {vr(ar,4)}, {vr(136+4*t,4)}" for t in range(4)]
            for x in merge(mf, other):
                a(x)
        else:
            kz = KZ[s % 3]
            p0 = AR + 4 * (k0 % NA)
            p1 = AR + 4 * ((k0 + 1) % NA)
            mf = [
                f"v_mfma_f32_16x16x32_bf16 v[200:203], {vr(kz,4)}, {vr(p0,4)}, 0",
                f"v_mfma_f32_16x16x32_bf16 v[204:207], {vr(kz+4,4)}, {vr(p0,4)}, 0",
                f"v_mfma_f32_16x16x32_bf16 v[208:211], {vr(kz+8,4)}, {vr(p1,4)}, 0",
                f"v_mfma_f32_16x16x32_bf16 v[212:215], {vr(kz+12,4)}, {vr(p1,4)}, 0",
            ]
            for x in merge(mf, other):
                a(x)
            a("""
            v_add_f32 v220, 0x358637bd, v204
            v_add_f32 v221, 0x358637bd, v212
            v_rcp_f32 v220, v220
            v_rcp_f32 v221, v221
            """)
            for r in range(4):
                a(f"v_mul_f32 v{200+r}, v{200+r}, v220")
            for r in range(4):
                a(f"v_mul_f32 v{208+r}, v{208+r}, v221")
            a("""
            v_cvt_pk_bf16_f32 v216, v200, v201
            v_cvt_pk_bf16_f32 v217, v202, v203
            v_cvt_pk_bf16_f32 v218, v208, v209
            v_cvt_pk_bf16_f32 v219, v210, v211
            """)
            for t in range(4):
                a(f"v_mfma_f32_16x16x32_bf16 {vr(152+4*t,4)}, {vr(f+4*t,4)}, v[216:219], {vr(152+4*t,4)}")
    stamp(a, 11)
    a("s_barrier")
    for t in range(4):
        a(f"ds_write_b128 v235, {vr(136+4*t,4)} offset:{64*t}")
        a(f"ds_write_b128 v235, {vr(152+4*t,4)} offset:{17408+64*t}")
    a("s_waitcnt lgkmcnt(0)")
    a("s_barrier")
    for arr in range(4):
        a(f"ds_read_b128 {vr(40+8*arr,4)}, v234 offset:{arr*17408}")
        a(f"ds_read_b128 {vr(44+8*arr,4)}, v234 offset:{arr*17408+16}")
    q.wait(["x", "b2"], lgkm=0)
    for j in range(4):
        a(f"""
        v_lshlrev_b32 v{72+2*j}, 16, v{32+j}
        v_and_b32 v{73+2*j}, 0xffff0000, v{32+j}
        v_lshlrev_b32 v{80+2*j}, 16, v{28+j}
        v_and_b32 v{81+2*j}, 0xffff0000, v{28+j}
        """)
    for e in range(8):
        a(f"v_add_f32 v{40+e}, v{40+e}, v{56+e}")
    for e in range(8):
        a(f"v_add_f32 v{48+e}, v{48+e}, v{64+e}")
    for e in range(8):
        a(f"v_add_f32 v{40+e}, v{40+e}, v{72+e}")
    for e in range(8):
        a(f"v_mul_f32_e64 v{88+e}, -v{40+e}, s55")
    for e in range(8):
        a(f"v_exp_f32 v{88+e}, v{88+e}")
    for e in range(8):
        a(f"v_add_f32 v{88+e}, 1.0, v{88+e}")
    for e in range(8):
        a(f"v_rcp_f32 v{88+e}, v{88+e}")
    for e in range(8):
        a(f"v_mul_f32 v{40+e}, v{40+e}, v{88+e}")
    for e in range(8):
        a(f"v_fma_f32 v{40+e}, v{40+e}, v{48+e}, v{80+e}")
    for j in range(4):
        a(f"v_cvt_pk_bf16_f32 v{96+j}, v{40+2*j}, v{41+2*j}")
    a("buffer_store_dwordx4 v[96:99], v232, s[64:67], 0 offen")
    stamp(a, 12)
    if PROF:
        a("s_waitcnt vmcnt(0)")
    stamp(a, 13)
    stamp(a, 15, True)
    stamp_flush(a, 1, 16)
    a("K2_END:")
    a("s_endpgm")
    a("CODE_END:")


def kd(name, nv):
    return f""".p2align 6
.amdhsa_kernel {name}
  .amdhsa_next_free_vgpr {nv}
  .amdhsa_next_free_sgpr 102
  .amdhsa_accum_offset {nv}
  .amdhsa_group_segment_fixed_size 0
  .amdhsa_kernarg_size 96
  .amdhsa_user_sgpr_count 2
  .amdhsa_user_sgpr_kernarg_segment_ptr 1
  .amdhsa_system_sgpr_workgroup_id_x 1
.end_amdhsa_kernel
"""


def main(out):
    a = Asm()
    a.raw(f"""; Two-launch implementation (generated by exp/gen.py; hand-designed assembly).
; @launch kernel=k1_kernel grid=(256,1,1) block=(512,1,1) lds={K1_LDS}
; @launch kernel=k2_kernel grid=(256,1,1) block=(512,1,1) lds={K2_LDS}
.amdgcn_target "amdgcn-amd-amdhsa--gfx950"
.text""")
    gen_k1(a)
    gen_k2(a)
    a.raw('.section .rodata,"a"\n' + kd("k1_kernel", 256) + kd("k2_kernel", 256))
    txt = a.finish()
    open(out, "w").write(txt)
    print("wrote", out, "lines", txt.count("\n"), "pads", a.npad)


if __name__ == "__main__":
    main(sys.argv[1] if len(sys.argv) > 1 else f"cdna_kernels/{NAME}.s")
```

```python
import sys
sys.path.insert(0, "exp")
from asmlib import Asm, VmQ, merge

NAME = "recurrent_scan__linear_kernel_hedgehog__dense_activation_squared_relu__prompt"

WS_H = 0
WS_PQ = 8 << 20
WS_PART = 12 << 20
WS_PARTZ = 13 << 20
WS_KVF = 14 << 20
WS_SIZE = 16 << 20

LOG2E = "0x3fb8aa3b"


def srd(a, d, lo, nbytes):
    a(f"""
    s_mov_b32 s{d}, s{lo}
    s_and_b32 s{d+1}, s{lo+1}, 0xffff
    s_mov_b32 s{d+2}, {nbytes}
    s_mov_b32 s{d+3}, 0x20000
    """)


import os
PROF = os.environ.get("PROF", "") != ""
PF1 = os.environ.get("PF1", "0") == "1"
PFR = os.environ.get("PFR", "1") == "1"
CODEPF = os.environ.get("CODEPF", "1") == "1"
PF2 = os.environ.get("PF2", "1") == "1"
PFW = os.environ.get("PFW", "1") == "1"
STF = os.environ.get("STF", "sc0 sc1")
WS_PROF = 15 << 20


STAMP_SLOT = {k: i for i, k in enumerate(eval(os.environ.get('SLOTS', '[0, 1, 2, 3, 4, 5, 6, 7, 8, 11, 12]')))}


def stamp(a, idx, clk=False):
    if PROF:
        if idx in STAMP_SLOT:
            b = 80 + 2 * STAMP_SLOT[idx]
            a(f"{'s_memtime' if clk else 's_memrealtime'} s[{b}:{b+1}]")


def stamp_flush(a, kern, n, vt=250):
    if not PROF:
        return
    a("s_waitcnt lgkmcnt(0)")
    a(f"""
    s_lshl_b32 s49, s2, 3
    s_add_u32 s49, s49, s46
    s_lshl_b32 s49, s49, 6
    s_add_u32 s49, s49, {WS_PROF + kern*131072}
    v_mov_b32 v{vt}, 0
    s_mov_b64 exec, 1
    """)
    for i in range(n):
        if i not in STAMP_SLOT:
            continue
        a(f"v_mov_b32 v{vt+1}, s{80+2*STAMP_SLOT[i]}")
        a(f"buffer_store_dword v{vt+1}, v{vt}, s[32:35], s49 offen offset:{4*i}")
        a("s_nop 1")
    a("s_mov_b64 exec, -1")


def vr(b, n):
    return f"v[{b}:{b+n-1}]"


def softmax_units(a, units, sl2e):
    def each(f):
        for u in units:
            a(f(u))
    P = lambda u, r: f"v{u['P']+r}"
    T = lambda u, r: f"v{u['T']+r}"
    each(lambda u: f"v_max3_f32 {T(u,8)}, {P(u,0)}, {P(u,1)}, {P(u,2)}")
    each(lambda u: f"v_max3_f32 {T(u,9)}, -{P(u,0)}, -{P(u,1)}, -{P(u,2)}")
    each(lambda u: f"v_max_f32 {T(u,8)}, {T(u,8)}, {P(u,3)}")
    each(lambda u: f"v_max_f32_e64 {T(u,9)}, {T(u,9)}, -{P(u,3)}")

    def allreduce(op):
        each(lambda u: f"v_permlane32_swap_b32 {T(u,8)}, {T(u,9)}")
        each(lambda u: f"{op} {T(u,10)}, {T(u,8)}, {T(u,9)}")
        each(lambda u: f"v_mov_b32 {T(u,11)}, {T(u,10)}")
        each(lambda u: f"v_permlane16_swap_b32 {T(u,10)}, {T(u,11)}")
        each(lambda u: f"{op} {T(u,8)}, {T(u,10)}, {T(u,11)}")
        each(lambda u: f"v_mov_b32 {T(u,9)}, {T(u,8)}")
        each(lambda u: f"v_permlane32_swap_b32 {T(u,8)}, {T(u,9)}")
    allreduce("v_max_f32")
    S = lambda u: u.get('S', sl2e)
    each(lambda u: f"v_mul_f32 {T(u,8)}, {S(u)}, {T(u,8)}")
    each(lambda u: f"v_mul_f32 {T(u,9)}, {S(u)}, {T(u,9)}")
    for r in range(4):
        each(lambda u: f"v_fma_f32 {T(u,r)}, {P(u,r)}, {S(u)}, -{T(u,8)}")
        each(lambda u: f"v_fma_f32 {T(u,4+r)}, -{P(u,r)}, {S(u)}, -{T(u,9)}")
    for r in range(8):
        each(lambda u: f"v_exp_f32 {T(u,r)}, {T(u,r)}")
    each(lambda u: f"v_add_f32 {T(u,8)}, {T(u,0)}, {T(u,1)}")
    each(lambda u: f"v_add_f32 {T(u,9)}, {T(u,4)}, {T(u,5)}")
    each(lambda u: f"v_add_f32 {T(u,10)}, {T(u,2)}, {T(u,3)}")
    each(lambda u: f"v_add_f32 {T(u,11)}, {T(u,6)}, {T(u,7)}")
    each(lambda u: f"v_add_f32 {T(u,8)}, {T(u,8)}, {T(u,10)}")
    each(lambda u: f"v_add_f32 {T(u,9)}, {T(u,9)}, {T(u,11)}")
    allreduce("v_add_f32")
    each(lambda u: f"v_rcp_f32 {T(u,8)}, {T(u,8)}")
    each(lambda u: f"v_rcp_f32 {T(u,9)}, {T(u,9)}")
    for r in range(4):
        each(lambda u: f"v_mul_f32 {T(u,r)}, {T(u,r)}, {T(u,8)}")
        each(lambda u: f"v_mul_f32 {T(u,4+r)}, {T(u,4+r)}, {T(u,9)}")
    for r in range(4):
        each(lambda u: f"v_cvt_pk_bf16_f32 v{u['O']+r}, {T(u,2*r)}, {T(u,2*r+1)}")


K1_NS = 3
K1_A, K1_Q, K1_H = 0, 49152, 98304
K1_WPHI = 147456
K1_RS = 148480
K1_CS = K1_RS + 1024
K1_LDS = K1_CS + 4096


def gen_k1(a):
    a.raw(".globl k1_kernel\n.p2align 8\n.type k1_kernel,@function\nk1_kernel:")
    a(f"""
    s_cmp_ge_u32 s2, 256
    s_cbranch_scc1 K1_END
    s_load_dwordx4 s[4:7], s[0:1], 0
    s_load_dwordx4 s[8:11], s[0:1], 16
    s_load_dwordx4 s[12:15], s[0:1], 40
    s_load_dwordx2 s[16:17], s[0:1], 88
    s_load_dwordx2 s[18:19], s[0:1], 56
    """)
    if CODEPF:
        a(f"""
        s_getpc_b64 s[50:51]
        K1_PCREF:
        s_sub_u32 s50, s50, K1_PCREF-k1_kernel
        s_subb_u32 s51, s51, 0
        v_lshlrev_b32 v4, 7, v0
        v_min_u32 v4, CODE_END-k1_kernel-4, v4
        global_load_dword v255, v4, s[50:51]
        """)
    stamp(a, 0)
    stamp(a, 14, True)
    a(f"""
    v_lshrrev_b32 v4, 6, v0
    v_and_b32 v1, 63, v0
    v_and_b32 v2, 15, v0
    v_bfe_u32 v3, v0, 4, 2
    v_readfirstlane_b32 s46, v4
    s_and_b32 s50, s2, 7             ; xcd
    s_lshr_b32 s51, s2, 3            ; j
    s_and_b32 s52, s50, 1
    s_lshl_b32 s52, s52, 3
    s_and_b32 s53, s51, 7
    s_add_u32 s44, s52, s53          ; rb
    s_lshr_b32 s52, s50, 1
    s_lshl_b32 s52, s52, 2
    s_lshr_b32 s53, s51, 3
    s_add_u32 s45, s52, s53          ; cb
    s_and_b32 s43, s45, 1            ; par
    s_and_b32 s47, s46, 3            ; rg
    s_lshr_b32 s48, s46, 2           ; role
    s_mov_b32 s55, {LOG2E}
    v_lshlrev_b32 v37, 4, v1         ; lane*16
    s_lshl_b32 s54, s46, 11
    """)
    a(f"""
    s_lshl_b32 s50, s44, 7
    s_lshl_b32 s51, s46, 4
    s_add_u32 s50, s50, s51
    v_lshrrev_b32 v4, 3, v1
    v_add_u32 v4, s50, v4
    v_lshlrev_b32 v4, 10, v4
    v_and_b32 v5, 7, v1
    v_xor_b32 v6, v5, v3
    v_lshl_add_u32 v10, v6, 4, v4
    v_xor_b32 v6, 4, v6
    v_lshl_add_u32 v11, v6, 4, v4
    v_add_u32 v11, 0x2000, v11
    """)
    a(f"""
    s_and_b32 s50, s46, 1
    s_lshl_b32 s50, s50, 2
    v_or_b32 v4, s50, v3
    v_lshlrev_b32 v4, 1, v4
    v_xor_b32 v4, v4, v2             ; u
    s_lshl_b32 s51, s46, 3
    v_add_u32 v5, s51, v3            ; row (e=0)
    v_lshrrev_b32 v6, 2, v4
    v_min_u32 v6, 2, v6              ; seg
    v_and_b32 v7, 3, v4
    v_lshlrev_b32 v6, 10, v6
    v_lshl_add_u32 v6, v7, 4, v6
    v_mul_u32_u24 v7, 3072, v5
    s_lshl_b32 s51, s45, 6
    v_add3_u32 v12, v6, v7, s51
    v_add_u32 v13, {4*3072}, v12
    v_min_u32 v6, 13, v4
    s_lshl_b32 s50, s43, 1
    v_add_u32 v6, s50, v6
    v_subrev_u32 v7, 14, v6
    v_min_u32 v6, v6, v7
    v_mul_u32_u24 v7, 3584, v5
    s_mul_i32 s51, s45, 224
    v_lshl_add_u32 v6, v6, 4, v7
    v_add_u32 v14, s51, v6
    v_add_u32 v15, {4*3584}, v14
    """)
    if PFR:
        a(f"""
        s_and_b32 s50, s2, 7
        s_lshr_b32 s51, s2, 3            ; j
        s_and_b32 s52, s50, 1
        s_lshl_b32 s52, s52, 10
        s_lshl_b32 s53, s51, 5
        s_add_u32 s52, s52, s53
        s_lshr_b32 s53, s47, 1
        s_lshl_b32 s53, s53, 4
        s_add_u32 s52, s52, s53
        v_add_u32 v4, s52, v2
        v_lshlrev_b32 v4, 10, v4         ; x variant
        s_lshr_b32 s50, s50, 1           ; xcd>>1
        v_lshrrev_b32 v5, 3, v2
        s_lshl_b32 s52, s51, 1
        v_add_u32 v5, s52, v5
        v_and_b32 v6, 7, v2
        v_min_u32 v7, 5, v6
        v_lshrrev_b32 v8, 1, v7
        v_and_b32 v7, 1, v7
        v_lshlrev_b32 v8, 10, v8
        v_lshl_add_u32 v8, v7, 7, v8
        v_mul_u32_u24 v7, 3072, v5
        s_lshl_b32 s52, s50, 8
        v_add3_u32 v7, v7, v8, s52
        v_min_u32 v6, 6, v6
        v_mul_u32_u24 v8, 3584, v5
        v_lshl_add_u32 v8, v6, 7, v8
        s_mul_i32 s52, s50, 896
        v_add_u32 v8, s52, v8            ; w1 variant
        s_cmp_eq_u32 s47, 1
        s_cselect_b64 s[52:53], -1, 0
        s_cmp_eq_u32 s47, 2
        s_cselect_b64 s[50:51], -1, 0
        v_cndmask_b32 v4, v4, v7, s[52:53]
        v_cndmask_b32 v254, v4, v8, s[50:51]
        s_movk_i32 s62, 128
        s_cmp_eq_u32 s47, 1
        s_cselect_b32 s62, {64*3072}, s62
        s_cmp_eq_u32 s47, 2
        s_cselect_b32 s62, {64*3584}, s62
        s_mul_i32 s63, s62, s48
        """)
    a("s_waitcnt lgkmcnt(0)")
    srd(a, 20, 4, 2048 * 1024)
    srd(a, 24, 6, 512 * 3072)
    srd(a, 28, 12, 512 * 3584)
    q = VmQ(a)
    if CODEPF:
        q.issue("cpf")
    if PFR:
        a(f"""
        s_cmp_eq_u32 s47, 1
        s_cselect_b32 s76, s24, s20
        s_cselect_b32 s77, s25, s21
        s_cselect_b32 s78, s26, s22
        s_cmp_eq_u32 s47, 2
        s_cselect_b32 s76, s28, s76
        s_cselect_b32 s77, s29, s77
        s_cselect_b32 s78, s30, s78
        s_mov_b32 s79, 0x20000
        buffer_load_dword v255, v254, s[76:79], s63 offen
        """)
        q.issue("pf")

    def dma(s):
        slot = s % K1_NS
        o = slot * 16384
        return [
            f"s_movk_i32 s57, {s*128}\ns_add_u32 m0, s54, {K1_A + o}\nbuffer_load_dwordx4 v10, s[20:23], s57 offen lds",
            f"s_add_u32 m0, s54, {K1_A + o + 1024}\nbuffer_load_dwordx4 v11, s[20:23], s57 offen lds",
            f"s_mov_b32 s58, {s*64*3072}\ns_add_u32 m0, s54, {K1_Q + o}\nbuffer_load_dwordx4 v12, s[24:27], s58 offen lds",
            f"s_add_u32 m0, s54, {K1_Q + o + 1024}\nbuffer_load_dwordx4 v13, s[24:27], s58 offen lds",
            f"s_mov_b32 s59, {s*64*3584}\ns_add_u32 m0, s54, {K1_H + o}\nbuffer_load_dwordx4 v14, s[28:31], s59 offen lds",
            f"s_add_u32 m0, s54, {K1_H + o + 1024}\nbuffer_load_dwordx4 v15, s[28:31], s59 offen lds",
        ]

    for s in range(2):
        for d in dma(s):
            a(d)
            q.issue(("st", s))
        if s == 0 and os.environ.get("PBAR", "1") == "1":
            a("s_barrier")
    srd(a, 32, 16, WS_SIZE)
    srd(a, 36, 14, 3584)
    srd(a, 64, 8, 16384)
    if PFW:
        srd(a, 68, 18, 1792 * 1024)
        srd(a, 72, 10, 512 * 1024)
    a(f"""
    s_mov_b32 m0, {K1_WPHI}
    s_lshl_b32 s51, s45, 10
    buffer_load_dwordx4 v37, s[64:67], s51 offen lds
    s_lshl_b32 s50, s2, 8
    s_add_u32 s50, s50, {WS_KVF}
    v_lshlrev_b32 v4, 2, v1
    v_mov_b32 v5, -1
    buffer_store_dword v5, v4, s[32:35], s50 offen
    """)
    q.issue("wphi")
    q.issue("sent")
    stamp(a, 1)
    FS = [64, 100]
    ACC = 136
    RSUM, RSQ, CSA = 192, 196, 200
    ONES = 228
    a(f"""
    v_lshrrev_b32 v4, 1, v2
    v_xor_b32 v4, v4, v3
    v_lshlrev_b32 v4, 4, v4
    s_lshl_b32 s50, s47, 5
    s_lshl_b32 s51, s48, 4
    s_add_u32 s51, s51, s50
    v_add_u32 v5, s51, v2
    v_lshl_add_u32 v16, v5, 7, v4
    v_xor_b32 v17, 64, v16
    v_xor_b32 v18, 0x800, v16
    v_xor_b32 v19, 0x800, v17
    v_lshlrev_b32 v4, 3, v5
    v_add_u32 v33, {K1_RS}, v4
    v_xor_b32 v35, 0x80, v33
    s_lshl_b32 s50, s47, 6
    s_lshl_b32 s51, s48, 9
    s_add_u32 s51, s51, {K1_CS}
    s_add_u32 s50, s50, s51
    v_lshlrev_b32 v4, 4, v3
    v_add_u32 v34, s50, v4
    v_add_u32 v36, s51, v4
    v_lshrrev_b32 v4, 2, v2
    v_and_b32 v5, 1, v3
    v_lshl_or_b32 v5, v5, 2, v4
    v_lshlrev_b32 v5, 5, v5
    v_lshl_add_u32 v6, v3, 3, v4     ; row = 8g + (i>>2)
    v_lshl_add_u32 v5, v6, 8, v5
    v_and_b32 v6, 3, v2
    v_lshl_add_u32 v5, v6, 3, v5
    s_mul_i32 s50, s48, {K1_H - K1_Q}
    s_add_u32 s50, s50, {K1_Q}
    v_add_u32 v232, s50, v5
    """)
    for t in range(1, 7):
        a(f"v_xor_b32 v{232+t}, {t << 5}, v232")
    for r in range(ACC, ONES):
        a(f"v_mov_b32 v{r}, 0")
    for r in range(4):
        a(f"v_mov_b32 v{ONES+r}, 0x3f803f80")
    a(f"""
    v_lshl_add_u32 v8, v3, 2, 0
    v_lshrrev_b32 v9, 2, v2
    v_add_u32 v8, v8, v9
    v_lshlrev_b32 v8, 5, v8
    v_and_b32 v9, 3, v2
    v_lshl_add_u32 v8, v9, 3, v8
    v_add_u32 v38, {K1_WPHI}, v8
    s_lshl_b32 s42, s44, 3
    s_lshl_b32 s50, s47, 1
    s_add_u32 s42, s42, s50
    """)
    a("s_cmp_eq_u32 s48, 1")
    a("s_cbranch_scc1 K1_HPATH")

    def k1_pf(sfx):
        return (f"""
        s_and_b32 s50, s2, 7
        s_lshr_b32 s51, s2, 3            ; j
        s_cmp_ge_u32 s46, 4
        s_cbranch_scc1 K1_PF_W{sfx}
        s_and_b32 s40, s50, 1
        s_lshl_b32 s40, s40, 20
        s_lshl_b32 s41, s51, 15
        s_add_u32 s40, s40, s41
        s_lshl_b32 s41, s46, 13
        s_add_u32 s40, s40, s41
        v_lshlrev_b32 v4, 7, v1
        buffer_load_dword v255, v4, s[20:23], s40 offen
        s_branch K1_PF_E{sfx}
        K1_PF_W{sfx}:
        s_and_b32 s41, s46, 1
        s_lshl_b32 s41, s41, 3
        s_lshl_b32 s40, s51, 4
        s_add_u32 s40, s40, s41
        v_lshrrev_b32 v4, 3, v1
        v_add_u32 v4, s40, v4            ; row
        v_and_b32 v5, 7, v1
        s_lshr_b32 s50, s50, 1           ; xcd>>1
        s_cmp_ge_u32 s46, 6
        s_cbranch_scc1 K1_PF_H{sfx}
        v_min_u32 v5, 5, v5
        v_lshrrev_b32 v6, 1, v5
        v_and_b32 v5, 1, v5
        v_lshlrev_b32 v6, 10, v6
        v_lshl_add_u32 v6, v5, 7, v6
        s_movk_i32 s41, 3072
        v_mul_lo_u32 v4, v4, s41
        v_add_u32 v4, v4, v6
        s_lshl_b32 s50, s50, 8
        buffer_load_dword v255, v4, s[24:27], s50 offen
        s_branch K1_PF_E{sfx}
        K1_PF_H{sfx}:
        s_movk_i32 s41, 3584
        v_mul_lo_u32 v4, v4, s41
        v_lshl_add_u32 v4, v5, 7, v4
        s_mul_i32 s50, s50, 896
        buffer_load_dword v255, v4, s[28:31], s50 offen
        K1_PF_E{sfx}:
        """)

    PKI, VI, QXI = 0, 16384, 24576

    def path(H, q):
        nt = 7 if H else 6
        if H:
            a(f"""
            s_mul_i32 s50, s45, 224
            s_lshl_b32 s51, s43, 5
            s_add_u32 s51, s51, s50
            v_lshlrev_b32 v4, 3, v3
            v_add_u32 v5, s51, v4
            s_mul_i32 s51, s43, 192
            s_sub_u32 s51, 192, s51
            s_add_u32 s51, s51, s50
            v_add_u32 v6, s51, v4
            """)
            for t in range(6):
                a(f"buffer_load_dwordx2 {vr(40+2*t,2)}, v5, s[36:39], 0 offen offset:{32*t}")
                q.issue("bias")
            a(f"buffer_load_dwordx2 {vr(52,2)}, v6, s[36:39], 0 offen")
            q.issue("bias")

        def reads(s, kk):
            o = (s % K1_NS) * 16384
            f = FS[kk]
            r = []
            for mi in range(2):
                r.append(f"ds_read_b128 {vr(f+4*mi,4)}, v{16+kk+2*mi} offset:{o}")
            for t in range(nt):
                r.append(f"ds_read_b64_tr_b16 {vr(f+8+4*t,2)}, v{232+t} offset:{o + kk*8192}")
                r.append(f"ds_read_b64_tr_b16 {vr(f+8+4*t+2,2)}, v{232+t} offset:{o + kk*8192 + 1024}")
            return r

        def compute(s, kk, other):
            f = FS[kk]
            mf = []
            for t in range(nt):
                for mi in range(2):
                    c = ACC + 8 * t + 4 * mi
                    mf.append(f"v_mfma_f32_16x16x32_bf16 {vr(c,4)}, {vr(f+8+4*t,4)}, {vr(f+4*mi,4)}, {vr(c,4)}")
            st = [f"v_mfma_f32_16x16x32_bf16 {vr(RSUM,4)}, {vr(ONES,4)}, {vr(f,4)}, {vr(RSUM,4)}",
                  f"v_mfma_f32_16x16x32_bf16 {vr(RSQ,4)}, {vr(f,4)}, {vr(f,4)}, {vr(RSQ,4)}"]
            if (s, kk) == (7, 1):
                for x in st + mf[:6]:
                    a(x)
                a(f"""
                s_mov_b64 exec, s[60:61]
                ds_write_b128 v34, {vr(CSA,4)}
                ds_write_b128 v34, {vr(CSA+4,4)} offset:256
                s_mov_b64 exec, -1
                """)
                a(mf[6]); a(mf[7])
                a(f"""
                v_cndmask_b32 v7, v{RSQ}, v{RSQ+1}, s[40:41]
                v_cndmask_b32 v7, v7, v{RSQ+2}, s[50:51]
                v_cndmask_b32 v7, v7, v{RSQ+3}, s[56:57]
                v_mov_b32 v6, v{RSUM}
                s_mov_b64 exec, s[58:59]
                ds_write_b64 v33, v[6:7]
                s_mov_b64 exec, -1
                ds_read_b64_tr_b16 v[56:57], v38
                ds_read_b64_tr_b16 v[58:59], v38 offset:512
                s_nop 1
                """)
                for x in mf[8:]:
                    a(x)
                return
            mf += st
            for x in merge(mf, other, ratio=int(os.environ.get("RATIO", "2"))):
                a(x)

        def colsum(s):
            lab = f"K1_CS_{int(H)}_{s}"
            for v in range(4):
                if v < 3:
                    a(f"s_cmp_lg_u32 s47, {v}")
                    a(f"s_cbranch_scc1 {lab}_{v+1}")
                for kk in range(2):
                    f = FS[kk]
                    for t in (v, v + 4):
                        if t < nt:
                            c = CSA + 4 * (t >> 2)
                            a(f"v_mfma_f32_16x16x32_bf16 {vr(c,4)}, {vr(f+8+4*t,4)}, {vr(ONES,4)}, {vr(c,4)}")
                if v < 3:
                    a(f"s_branch {lab}_e")
                    a(f"{lab}_{v+1}:")
            a(f"{lab}_e:")

        def k1_pfw():
            lab = f"K1_PW_{int(H)}"
            return [f"""
                s_lshr_b32 s51, s2, 3
                v_lshlrev_b32 v4, 7, v1
                s_mul_i32 s40, s51, 57344
                s_lshl_b32 s41, s46, 13
                s_add_u32 s40, s40, s41
                s_lshl_b32 s41, s51, 14
                s_cmp_eq_u32 s46, 7
                s_cbranch_scc1 {lab}_o
                buffer_load_dword v255, v4, s[68:71], s40 offen
                s_branch {lab}_e
                {lab}_o:
                buffer_load_dword v255, v4, s[72:75], s41 offen
                {lab}_e:
                """, f"""
                s_add_u32 s41, s41, 8192
                buffer_load_dword v255, v4, s[72:75], s41 offen
                """]

        def touch(st):
            return f"s_mul_i32 s63, s62, {st}\nbuffer_load_dword v255, v254, s[76:79], s63 offen"
        PFD = int(os.environ.get("PFD", "4"))
        if PFR and not H:
            for st in range(2, PFD):
                a(touch(st))
                q.issue("pf")
        q.wait([("st", 0)])
        stamp(a, 2)
        a("s_barrier")
        for r in reads(0, 0):
            a(r)
        for s in range(8):
            if s in (1, 2, 4, 6) and not os.environ.get('SLOTS'):
                stamp(a, 3 + (1, 2, 4, 6).index(s))
            a("s_waitcnt lgkmcnt(0)")
            other = reads(s, 1)
            if s == 0:
                for d in dma(2):
                    other.append(d)
                    q.issue(("st", 2))
            if PFR and not H and s + PFD < 8:
                other.append(touch(s + PFD))
                q.issue("pf")
            if PF1 and s == int(os.environ.get("PF1S", "0")):
                other.append(k1_pf("h" if H else "q"))
                q.issue("pf")
            if PFW and s == int(os.environ.get("PFWS", "6")):
                for d in k1_pfw():
                    other.append(d)
                    q.issue("pfw")
            compute(s, 0, other)
            q.wait([("st", s + 1)] if s + 1 < 8 else [], lgkm=0)
            a("s_barrier")
            if s == 7:
                a(f"""
                v_and_b32 v4, 3, v2
                v_lshrrev_b32 v5, 2, v2
                v_cmp_eq_u32 s[40:41], 1, v4
                v_cmp_eq_u32 s[50:51], 2, v4
                v_cmp_eq_u32 s[56:57], 3, v4
                v_cmp_eq_u32 s[58:59], v5, v3
                v_cmp_eq_u32 s[60:61], 0, v2
                """)
            colsum(s)
            other = []
            if s + 1 < 8:
                other += reads(s + 1, 0)
            if s + K1_NS < 8:
                for d in dma(s + K1_NS):
                    other.append(d)
                    q.issue(("st", s + K1_NS))
            compute(s, 1, other)
        stamp(a, 7)
        a("""
        s_waitcnt lgkmcnt(0)
        s_barrier
        """)
        stamp(a, 8)
        CS = 64
        a("""
        ds_read_b64 v[4:5], v33
        ds_read_b64 v[6:7], v35
        """)
        for t in range(nt):
            a(f"ds_read_b128 {vr(CS+4*t,4)}, v36 offset:{64*t}")
        a(f"s_waitcnt lgkmcnt({nt})")
        a("""
        v_mul_f32 v4, 0x3b000000, v4
        v_mul_f32 v5, 0x3b000000, v5
        v_mul_f32 v6, 0x3b000000, v6
        v_mul_f32 v7, 0x3b000000, v7
        v_fma_f32 v5, -v4, v4, v5
        v_fma_f32 v7, -v6, v6, v7
        v_max_f32 v5, 0, v5
        v_max_f32 v7, 0, v7
        v_add_f32 v5, 0x3727c5ac, v5
        v_add_f32 v7, 0x3727c5ac, v7
        v_rsq_f32 v60, v5
        v_rsq_f32 v61, v7
        v_sub_f32 v20, 0, v4
        v_sub_f32 v21, 0, v6
        v_mul_f32 v62, v20, v60
        v_mul_f32 v63, v21, v61
        v_mul_f32 v22, s55, v60
        v_mul_f32 v23, s55, v61
        s_waitcnt lgkmcnt(0)
        """)
        a(f"""
        s_lshl_b32 s50, s42, 5
        s_lshl_b32 s51, s45, 1
        s_add_u32 s50, s50, s51
        s_lshl_b32 s50, s50, 10
        s_add_u32 s60, s50, {WS_PQ}
        s_add_u32 s61, s60, 32768
        s_lshl_b32 s50, s47, 10
        s_add_u32 s50, s50, {QXI}
        v_lshlrev_b32 v39, 3, v1
        v_add_u32 v39, s50, v39
        """)
        if H:
            q.wait(["bias"])
            BU = 100
            for t in range(7):
                a(f"""
                v_lshlrev_b32 v{BU+4*t}, 16, v{40+2*t}
                v_and_b32 v{BU+4*t+1}, 0xffff0000, v{40+2*t}
                v_lshlrev_b32 v{BU+4*t+2}, 16, v{41+2*t}
                v_and_b32 v{BU+4*t+3}, 0xffff0000, v{41+2*t}
                """)
            a(f"""
            s_lshr_b32 s50, s45, 1
            s_mul_i32 s50, s50, 7
            s_lshl_b32 s51, s43, 2
            s_add_u32 s51, s51, s50
            s_add_u32 s50, s50, 3
            s_lshl_b32 s51, s51, 10
            s_lshl_b32 s50, s50, 10
            s_lshl_b32 s52, s43, 3
            s_add_u32 s50, s50, s52
            s_mul_i32 s53, s42, {56*1024}
            s_add_u32 s52, s53, {56*1024}
            s_add_u32 s56, s51, s52
            s_add_u32 s57, s51, s53          ; mi=1
            s_add_u32 s58, s50, s52
            s_add_u32 s59, s50, s53
            """)
            OUT = 192

            def hepi(mi):
                for t in range(7):
                    c = ACC + 8 * t + 4 * mi
                    tmp = 128 + 4 * (t & 1)
                    for r in range(4):
                        a(f"v_fma_f32 v{tmp+r}, v{62+mi}, v{CS+4*t+r}, v{BU+4*t+r}")
                    for r in range(4):
                        a(f"v_fma_f32 v{c+r}, v{c+r}, v{60+mi}, v{tmp+r}")
                    for r in range(4):
                        a(f"v_max_f32 v{c+r}, 0, v{c+r}")
                    for r in range(4):
                        a(f"v_mul_f32 v{c+r}, v{c+r}, v{c+r}")
                    o = OUT + 16 * mi + 2 * t
                    a(f"v_cvt_pk_bf16_f32 v{o}, v{c}, v{c+1}")
                    a(f"v_cvt_pk_bf16_f32 v{o+1}, v{c+2}, v{c+3}")
                    if t in (1, 3, 5):
                        a(f"buffer_store_dwordx4 {vr(o-2,4)}, v37, s[32:35], s{56+mi} offen offset:{(t>>1)*1024} {STF}")
                    if t == 6:
                        a(f"buffer_store_dwordx2 {vr(o,2)}, v37, s[32:35], s{58+mi} offen {STF}")
            hepi(0)
            a("s_barrier")
            a("""
            ds_read_b64 v[24:25], v39
            ds_read_b64 v[26:27], v39 offset:512
            """)
            hepi(1)
            a("s_waitcnt lgkmcnt(0)")
            units = []
            for hh in range(2):
                u = dict(P=136 + 4 * hh, T=64 + 12 * hh, O=144 + 4 * hh, hh=hh, S="v22")
                a(f"v_mfma_f32_16x16x16_bf16 {vr(u['P'],4)}, {vr(56+2*hh,2)}, {vr(24+2*hh,2)}, 0")
                units.append(u)
            a(f"""
            s_lshr_b32 s50, s47, 1
            s_and_b32 s51, s47, 1
            v_lshrrev_b32 v4, 2, v2
            v_lshl_add_u32 v4, v3, 3, v4     ; row = 8g + (i>>2)
            v_and_b32 v5, 3, v2
            v_lshlrev_b32 v5, 3, v5
            v_lshl_add_u32 v8, v4, 6, v5
            s_lshl_b32 s52, s50, 13
            s_lshl_b32 s53, s51, 5
            s_add_u32 s52, s52, s53
            s_add_u32 s52, s52, {PKI}
            v_add_u32 v8, s52, v8
            v_lshl_add_u32 v9, v4, 5, v5
            s_lshl_b32 s52, s50, 12
            s_add_u32 s52, s52, {VI}
            v_add_u32 v9, s52, v9
            s_lshl_b32 s52, s44, 5
            s_lshl_b32 s53, s45, 1
            s_add_u32 s53, s53, s50          ; head
            s_add_u32 s52, s52, s53
            s_lshl_b32 s51, s51, 4           ; sign*16
            s_lshl_b32 s53, s52, 7
            s_add_u32 s53, s53, s51
            s_add_u32 s53, s53, {WS_PARTZ}
            s_lshl_b32 s52, s52, 11
            s_add_u32 s52, s52, s51
            s_add_u32 s52, s52, {WS_PART}
            v_lshlrev_b32 v4, 5, v1
            v_lshlrev_b32 v5, 5, v3
            v_cmp_eq_u32 s[62:63], 0, v2
            """)
            softmax_units(a, units, "s55")
            for u in units:
                a(f"buffer_store_dwordx4 {vr(u['O'],4)}, v37, s[32:35], s61 offen offset:{u['hh']*1024} {STF}")
            stamp(a, 9)
            a("s_barrier")
            stamp(a, 10)
            for kk in range(4):
                fa, fb = 152 + 8 * kk, 156 + 8 * kk
                a(f"""
                ds_read_b64_tr_b16 {vr(fa,2)}, v8 offset:{kk*2048}
                ds_read_b64_tr_b16 {vr(fa+2,2)}, v8 offset:{kk*2048+256}
                ds_read_b64_tr_b16 {vr(fb,2)}, v9 offset:{kk*1024}
                ds_read_b64_tr_b16 {vr(fb+2,2)}, v9 offset:{kk*1024+128}
                """)
            a("s_waitcnt lgkmcnt(0)")
            for kk in range(4):
                fa, fb = 152 + 8 * kk, 156 + 8 * kk
                c0 = "0" if kk == 0 else "v[44:47]"
                c1 = "0" if kk == 0 else "v[48:51]"
                a(f"v_mfma_f32_16x16x32_bf16 v[44:47], {vr(fa,4)}, {vr(fb,4)}, {c0}")
                a(f"v_mfma_f32_16x16x32_bf16 v[48:51], {vr(fa,4)}, {vr(ONES,4)}, {c1}")
            a(f"""
            buffer_store_dwordx4 v[44:47], v4, s[32:35], s52 offen {STF}
            s_mov_b64 exec, s[62:63]
            buffer_store_dwordx4 v[48:51], v5, s[32:35], s53 offen {STF}
            s_mov_b64 exec, -1
            """)
        else:
            PK2 = 192

            def fold(t, mi, scaled):
                c = ACC + 8 * t + 4 * mi
                for r in range(4):
                    a(f"v_fma_f32 v{c+r}, v{20+mi}, v{CS+4*t+r}, v{c+r}")
                if scaled:
                    for r in range(4):
                        a(f"v_mul_f32 v{c+r}, v{c+r}, v{60+mi}")
                o = PK2 + (t * 2 + mi) * 2
                a(f"v_cvt_pk_bf16_f32 v{o}, v{c}, v{c+1}")
                a(f"v_cvt_pk_bf16_f32 v{o+1}, v{c+2}, v{c+3}")
            a(f"""
            s_lshl_b32 s50, s47, 5
            v_add_u32 v4, s50, v2
            v_lshlrev_b32 v5, 3, v3
            v_lshl_add_u32 v6, v4, 6, v5
            v_lshl_add_u32 v7, v4, 5, v5     ; V write: m*32 + 8g
            """)
            for hh in range(2):
                fold(hh, 1, False)
                a(f"ds_write_b64 v39, {vr(PK2 + (hh*2+1)*2, 2)} offset:{hh*512}")
            for t in (2, 3):
                for mi in range(2):
                    fold(t, mi, False)
            units = []
            for hh in range(2):
                for mi in range(2):
                    k = hh * 2 + mi
                    u = dict(P=ACC + 8 * (2 + hh) + 4 * mi, T=88 + 12 * k, O=216 + 4 * k, hh=hh, mi=mi, S=f"v{22+mi}")
                    o = PK2 + ((2 + hh) * 2 + mi) * 2
                    a(f"v_mfma_f32_16x16x16_bf16 {vr(u['P'],4)}, {vr(56+2*hh,2)}, {vr(o,2)}, 0")
                    units.append(u)
            for t in (4, 5):
                for mi in range(2):
                    fold(t, mi, True)
            for hh in range(2):
                for mi in range(2):
                    o = PK2 + ((4 + hh) * 2 + mi) * 2
                    a(f"ds_write_b64 v7, {vr(o,2)} offset:{VI + hh*4096 + mi*512}")
            a("s_waitcnt lgkmcnt(4)")
            a("s_barrier")
            softmax_units(a, units, "s55")
            for u in units:
                base = PKI + u['hh'] * 8192 + u['mi'] * 1024
                a(f"ds_write_b64 v6, {vr(u['O'],2)} offset:{base}")
                a(f"ds_write_b64 v6, {vr(u['O']+2,2)} offset:{base+32}")
            units = []
            for hh in range(2):
                fold(hh, 0, False)
            for hh in range(2):
                u = dict(P=ACC + 8 * hh, T=88 + 12 * hh, O=168 + 4 * hh, hh=hh, S="v22")
                a(f"v_mfma_f32_16x16x16_bf16 {vr(u['P'],4)}, {vr(56+2*hh,2)}, {vr(PK2 + hh*4,2)}, 0")
                units.append(u)
            a("s_waitcnt lgkmcnt(0)")
            stamp(a, 9)
            a("s_barrier")
            stamp(a, 10)
            softmax_units(a, units, "s55")
            for u in units:
                a(f"buffer_store_dwordx4 {vr(u['O'],4)}, v37, s[32:35], s60 offen offset:{u['hh']*1024} {STF}")
        stamp(a, 11)
        if PROF:
            a("s_waitcnt vmcnt(0)")
        stamp(a, 12)
        stamp(a, 15, True)
        stamp_flush(a, 0, 16)
        a("s_branch K1_END")

    q2 = q.copy()
    path(False, q)
    a("K1_HPATH:")
    a("s_nop 4")
    path(True, q2)
    a("K1_END:")
    a("s_endpgm")


K2_NS = 11
K2_KV = K2_NS * 8192
K2_LDS = K2_KV + 34816
K2_NA = 12
K2_NST = 36
K2_SCR = 24576
KV_TRIES = int(os.environ.get('KV_TRIES', '200'))
P_KVW = int(os.environ.get('ATT0', '20')) - 6
P_KVL = P_KVW - 7


def gen_k2(a):
    a.raw(".globl k2_kernel\n.p2align 8\n.type k2_kernel,@function\nk2_kernel:")
    a(f"""
    s_cmp_ge_u32 s2, 256
    s_cbranch_scc1 K2_END
    s_load_dwordx2 s[4:5], s[0:1], 0
    s_load_dwordx2 s[6:7], s[0:1], 24
    s_load_dwordx4 s[8:11], s[0:1], 56
    s_load_dwordx2 s[12:13], s[0:1], 72
    s_load_dwordx2 s[16:17], s[0:1], 88
    """)
    stamp(a, 0)
    stamp(a, 14, True)
    a(f"""
    v_lshrrev_b32 v4, 6, v0
    v_and_b32 v1, 63, v0
    v_and_b32 v2, 15, v0
    v_bfe_u32 v3, v0, 4, 2
    v_readfirstlane_b32 s46, v4
    s_and_b32 s50, s2, 7             ; xcd
    s_lshr_b32 s51, s2, 3
    s_lshl_b32 s52, s50, 2
    s_and_b32 s53, s51, 3            ; mb_l
    s_add_u32 s60, s52, s53          ; mb
    s_lshr_b32 s61, s51, 2           ; nb
    s_mul_i32 s52, s53, 7
    s_mul_i32 s56, s61, 11
    s_add_u32 s52, s52, s56
    s_add_u32 s52, s52, s50          ; <= 21+77+7 = 105
    s_mul_i32 s56, s52, 147
    s_lshr_b32 s56, s56, 12
    s_mul_i32 s56, s56, 28
    s_sub_u32 s42, s52, s56
    s_and_b32 s42, s42, {int(os.environ.get("ROT2", "0"))}
    s_lshl_b32 s52, s53, 1
    s_add_u32 s52, s52, s61
    s_add_u32 s52, s52, s50
    s_and_b32 s43, s52, {int(os.environ.get("ROT3", "0"))}
    s_and_b32 s47, s46, 3            ; mt_l
    s_lshr_b32 s48, s46, 2           ; kh
    s_lshl_b32 s54, s46, 10          ; w*1024
    s_mov_b32 s55, {LOG2E}
    s_lshl_b32 s62, s60, 2
    s_add_u32 s62, s62, s47          ; mt
    s_movk_i32 s58, 4096
    """)
    a(f"""
    v_lshrrev_b32 v4, 3, v1
    s_lshl_b32 s50, s46, 3
    v_add_u32 v4, s50, v4
    v_and_b32 v5, 7, v1
    v_lshlrev_b32 v6, 1, v3
    v_xor_b32 v5, v5, v6
    v_lshlrev_b32 v5, 4, v5
    v_lshl_add_u32 v4, v4, 10, v5
    s_lshl_b32 s50, s61, 7
    v_add_u32 v10, s50, v4           ; vOffB
    v_lshlrev_b32 v17, 4, v1         ; lane*16
    s_mul_i32 s50, s62, 56
    s_add_u32 s50, s50, s48
    s_lshl_b32 s50, s50, 10
    v_add_u32 v11, s50, v17          ; vOffA (h)
    s_lshl_b32 s50, s62, 5
    s_lshl_b32 s51, s48, 1
    s_add_u32 s50, s50, s51
    s_lshl_b32 s50, s50, 10
    s_add_u32 s50, s50, {WS_PQ}
    v_add_u32 v12, s50, v17          ; vOffP
    """)
    a(f"""
    v_lshrrev_b32 v4, 2, v2
    v_lshl_add_u32 v4, v3, 2, v4
    s_lshl_b32 s50, s48, 5
    v_add_u32 v4, s50, v4
    v_lshrrev_b32 v5, 3, v2
    v_lshl_add_u32 v5, v3, 1, v5
    v_and_b32 v5, 3, v5
    v_lshlrev_b32 v5, 5, v5
    v_lshl_add_u32 v4, v4, 7, v5
    v_and_b32 v5, 3, v2
    v_lshl_add_u32 v13, v5, 3, v4
    v_xor_b32 v14, 32, v13
    v_xor_b32 v15, 64, v13
    v_xor_b32 v16, 96, v13
    v_add_u32 v236, 0x10000, v13
    v_add_u32 v237, 0x10000, v14
    v_add_u32 v238, 0x10000, v15
    v_add_u32 v239, 0x10000, v16
    """)
    a(f"""
    s_lshl_b32 s50, s2, 3
    s_add_u32 s50, s50, s46          ; slice
    s_sub_u32 s51, s50, 1024
    s_lshl_b32 s52, s50, 6
    s_add_u32 s52, s52, {WS_PART}
    s_and_b32 s53, s51, 63
    s_lshl_b32 s53, s53, 6
    s_add_u32 s53, s53, {WS_PARTZ}   ; z source
    s_cmp_lt_u32 s50, 1024
    s_cselect_b32 s52, s52, s53
    s_cselect_b32 s53, 16, 12
    v_lshrrev_b32 v4, 2, v1
    v_lshlrev_b32 v4, s53, v4
    v_and_b32 v5, 3, v1
    v_lshl_add_u32 v4, v5, 4, v4
    v_add_u32 v36, s52, v4
    s_lshl_b32 s52, s50, 5
    s_add_u32 s52, s52, {WS_KVF}
    v_lshlrev_b32 v5, 3, v5
    v_add_u32 v37, s52, v5
    s_lshl_b32 s50, s46, 12
    s_add_u32 s51, s50, {WS_KVF}
    v_add_u32 v38, s51, v17
    s_add_u32 s51, s50, {K2_KV}
    v_add_u32 v39, s51, v17
    s_lshl_b32 s50, s46, 8
    v_lshlrev_b32 v4, 2, v1
    v_add_u32 v4, s50, v4            ; w*256 + lane*4
    v_add_u32 v8, {WS_KVF + 32768}, v4
    v_add_u32 v9, {K2_KV + 32768}, v4
    s_lshl_b32 s50, s48, 11
    s_add_u32 s50, s50, {K2_KV}
    v_add_u32 v18, s50, v17
    s_lshl_b32 s50, s48, 7
    s_add_u32 s50, s50, {K2_KV + 32768}
    v_lshlrev_b32 v4, 4, v3
    v_add_u32 v19, s50, v4
    """)
    a(f"""
    v_lshrrev_b32 v4, 3, v0
    v_and_b32 v5, 7, v0
    s_lshl_b32 s50, s60, 6
    v_add_u32 v6, s50, v4
    v_lshlrev_b32 v6, 10, v6
    v_lshlrev_b32 v7, 4, v5
    s_lshl_b32 s50, s61, 7
    v_add_u32 v7, s50, v7
    v_add_u32 v232, v6, v7
    v_mov_b32 v233, v7               ; b2 offset
    s_movk_i32 s50, 272
    v_mul_lo_u32 v6, v4, s50
    v_lshl_add_u32 v234, v5, 5, v6
    v_add_u32 v234, {K2_SCR}, v234
    s_lshl_b32 s51, s47, 4
    v_add_u32 v6, s51, v2
    v_mul_lo_u32 v6, v6, s50
    v_lshl_add_u32 v6, v3, 4, v6
    s_mul_i32 s51, s48, {2*17408}
    s_add_u32 s51, s51, {K2_SCR}
    v_add_u32 v235, s51, v6
    """)
    for r in range(136, 168):
        a(f"v_mov_b32 v{r}, 0")
    a("s_waitcnt lgkmcnt(0)")
    srd(a, 20, 4, 2048 * 1024)
    srd(a, 24, 6, 512 * 1024)
    srd(a, 28, 8, 1792 * 1024)
    srd(a, 32, 16, WS_SIZE)
    srd(a, 36, 10, 1024)
    srd(a, 64, 12, 2048 * 1024)
    q = VmQ(a)
    AR = 40
    NA = K2_NA
    BF = [88, 104, 120]
    KZ = [168, 184, 240]

    ATT0 = int(os.environ.get("ATT0", "20"))
    ORD = list(range(ATT0)) + list(range(28, 36)) + list(range(ATT0, 28))
    isatt = lambda p: ORD[p] >= 28

    def dma(s):
        slot = s % K2_NS
        sr = "s[28:31]" if not isatt(s) else "s[24:27]"
        so = (ORD[s] if not isatt(s) else ORD[s] - 28) * 65536
        if os.environ.get("K2NOB"):
            so = 0
        return f"s_mov_b32 s56, {so}\ns_add_u32 m0, s54, {slot*8192}\nbuffer_load_dwordx4 v10, {sr}, s56 offen lds"

    frags = []
    for s in range(36):
        frags.append((s, 0))
        if isatt(s):
            frags.append((s, 1))
    first_frag = {}
    for k, (s, e) in enumerate(frags):
        first_frag.setdefault(s, k)

    def aload(k):
        p, e = frags[k]
        s = ORD[p]
        r = AR + 4 * (k % NA)
        if os.environ.get("K2NOA"):
            return f"s_mov_b32 s57, 0\nbuffer_load_dwordx4 {vr(r,4)}, v11, s[32:35], s57 offen"
        if s < 28:
            return f"s_mov_b32 s57, {s*2048}\nbuffer_load_dwordx4 {vr(r,4)}, v11, s[32:35], s57 offen"
        return f"s_mov_b32 s57, {(s-28)*4096}\nbuffer_load_dwordx4 {vr(r,4)}, v12, s[32:35], s57 offen offset:{e*1024}"

    a("buffer_load_dwordx4 v[20:23], v36, s[32:35], 0 offen")
    q.issue("part")
    nextA = 0
    nextB = 0
    PRE = int(os.environ.get("PRE", "4"))
    for s in range(PRE):
        a(dma(s)); q.issue(("B", s)); nextB += 1
        a(aload(nextA)); q.issue(("A", nextA)); nextA += 1
    stamp(a, 1)
    q.wait(["part"])
    stamp(a, 2)
    for r in range(4):
        a(f"v_add_f32_dpp v{24+r}, v{20+r}, v{20+r} row_ror:8 row_mask:0xf bank_mask:0xf")
    for r in range(4):
        a(f"v_add_f32_dpp v{20+r}, v{24+r}, v{24+r} row_ror:4 row_mask:0xf bank_mask:0xf")
    for sw in ("v_permlane16_swap_b32", "v_permlane32_swap_b32"):
        for r in range(4):
            a(f"v_mov_b32 v{24+r}, v{20+r}")
        for r in range(4):
            a(f"{sw} v{20+r}, v{24+r}")
        for r in range(4):
            a(f"v_add_f32 v{20+r}, v{20+r}, v{24+r}")
    a("""
    v_cvt_pk_bf16_f32 v24, v20, v21
    v_cvt_pk_bf16_f32 v25, v22, v23
    v_min_u32 v24, 0xfffeffff, v24
    v_min_u32 v25, 0xfffeffff, v25
    s_mov_b64 exec, 15
    buffer_store_dwordx2 v[24:25], v37, s[32:35], 0 offen sc0 sc1
    s_mov_b64 exec, -1
    """)
    q.issue("kvst")

    def reads(s):
        slot = s % K2_NS
        f = BF[s % 3]
        r = []
        vb, off = (13, slot * 8192) if slot < 8 else (236, (slot - 8) * 8192)
        for t in range(4):
            r.append(f"ds_read_b64_tr_b16 {vr(f+4*t,2)}, v{vb+t} offset:{off}")
            r.append(f"ds_read_b64_tr_b16 {vr(f+4*t+2,2)}, v{vb+t} offset:{off+2048}")
        if isatt(s):
            kz = KZ[s % 3]
            hb = (ORD[s] - 28) * 4096
            r.append(f"ds_read_b128 {vr(kz,4)}, v18 offset:{hb}")
            r.append(f"ds_read_b128 {vr(kz+4,4)}, v19 offset:{hb//16}")
            r.append(f"ds_read_b128 {vr(kz+8,4)}, v18 offset:{hb+1024}")
            r.append(f"ds_read_b128 {vr(kz+12,4)}, v19 offset:{hb//16+64}")
        return r

    def kvloads():
        r = []
        for k in range(4):
            r.append(f"buffer_load_dwordx4 {vr(168+4*k,4)}, v38, s[32:35], 0 offen offset:{k*1024} sc1")
        r.append("buffer_load_dword v184, v8, s[32:35], 0 offen sc1")
        return r

    q.wait([("B", 1)])
    a("s_barrier")
    lds_out = []

    def lds_issue(tag, n):
        lds_out.extend([tag] * n)

    def lds_need(tags):
        idx = -1
        for i, t in enumerate(lds_out):
            if t in tags:
                idx = i
        if idx < 0:
            return None
        n = len(lds_out) - 1 - idx
        del lds_out[:idx + 1]
        return min(n, 15) if n <= 15 else None if False else min(n, 15)

    for s0 in (0, 1):
        rr = reads(s0)
        for r in rr:
            a(r)
        lds_issue(("r", s0), len(rr))
    for s in range(K2_NST):
        K2ST = (0, 4, 10, 16, 22, 28)
        if s in K2ST:
            stamp(a, 3 + K2ST.index(s))
        f = BF[s % 3]
        k0 = first_frag[s]
        nfr = 1 if not isatt(s) else 2
        tags = [("A", k0 + nfr - 1)]
        even = (s & 1) == 0
        if even:
            tags += [("B", x) for x in (s + 2, s + 3) if x < K2_NST]
        if s == P_KVW:
            tags.append("kvf")
        ltags = [("r", s)]
        if even:
            ltags.append("kvw")
        ln = lds_need(ltags)
        q.wait(tags, lgkm=ln)
        if s == P_KVW:
            a("s_mov_b32 s49, 0")
            a("K2_KVCHK:")
            a("v_max3_u32 v26, v168, v169, v184")
            for r in range(170, 184, 2):
                a(f"v_max3_u32 v26, v26, v{r}, v{r+1}")
            a(f"""
            v_cmp_eq_u32 vcc, -1, v26
            s_cbranch_vccz K2_KVOK
            s_add_u32 s49, s49, 1
            s_cmp_gt_u32 s49, {KV_TRIES}
            s_cbranch_scc1 K2_KVSELF
            s_sleep 4
            """)
            for x in kvloads():
                a(x)
            a("""
            s_waitcnt vmcnt(0)
            s_branch K2_KVCHK
            K2_KVSELF:
            """)
            a(f"""
            s_lshl_b32 s50, s46, 13
            s_add_u32 s50, s50, {WS_PART}
            v_lshlrev_b32 v26, 5, v1
            v_add_u32 v26, s50, v26
            """)
            for k in range(4):
                for r in range(8):
                    a(f"v_mov_b32 v{200+r}, 0")
                a(f"""
                s_mov_b32 s50, {k*2048}
                K2_KVS_{k}:
                buffer_load_dwordx4 v[208:211], v26, s[32:35], s50 offen
                buffer_load_dwordx4 v[212:215], v26, s[32:35], s50 offen offset:16
                s_waitcnt vmcnt(0)
                """)
                for r in range(8):
                    a(f"v_add_f32 v{200+r}, v{200+r}, v{208+r}")
                a(f"""
                s_add_u32 s50, s50, 65536
                s_cmp_lt_u32 s50, {16*65536}
                s_cbranch_scc1 K2_KVS_{k}
                """)
                for r in range(4):
                    a(f"v_cvt_pk_bf16_f32 v{168+4*k+r}, v{200+2*r}, v{201+2*r}")
            a(f"""
            s_lshl_b32 s50, s46, 9
            s_add_u32 s50, s50, {WS_PARTZ}
            v_lshlrev_b32 v26, 3, v1
            v_add_u32 v26, s50, v26
            v_mov_b32 v200, 0
            v_mov_b32 v201, 0
            s_mov_b32 s50, 0
            K2_KVS_Z:
            buffer_load_dwordx2 v[208:209], v26, s[32:35], s50 offen
            s_waitcnt vmcnt(0)
            v_add_f32 v200, v200, v208
            v_add_f32 v201, v201, v209
            s_add_u32 s50, s50, 4096
            s_cmp_lt_u32 s50, 65536
            s_cbranch_scc1 K2_KVS_Z
            v_cvt_pk_bf16_f32 v184, v200, v201
            """)
            a("K2_KVOK:")
            a("s_nop 1")
        if even:
            a("s_barrier")
        other = []
        if s + 2 < K2_NST:
            rr = reads(s + 2)
            other += rr
            lds_issue(("r", s + 2), len(rr))
        if s in (P_KVW, P_KVW + 1):
            for r in range(2 * (s - P_KVW), 2 * (s - P_KVW) + 2):
                other.append(f"ds_write_b128 v39, {vr(168+4*r,4)} offset:{r*1024}")
                lds_issue("kvw", 1)
            if s == P_KVW:
                other.append("ds_write_b32 v9, v184")
                lds_issue("kvw", 1)
        if s == P_KVL:
            for x in kvloads():
                other.append(x)
                q.issue("kvf")
        if s == 6:
            other.append("buffer_load_dwordx4 v[28:31], v232, s[20:23], 0 offen")
            q.issue("x")
            other.append("buffer_load_dwordx4 v[32:35], v233, s[36:39], 0 offen")
            q.issue("b2")
        lim = (s if even else s - 1) + K2_NS
        for rep in range(3):
            if nextB < K2_NST and nextB <= lim:
                other.append(dma(nextB)); q.issue(("B", nextB)); nextB += 1
            if nextA < len(frags) and nextA - NA < k0:
                other.append(aload(nextA)); q.issue(("A", nextA)); nextA += 1
        if not isatt(s):
            ar = AR + 4 * (k0 % NA)
            mf = [f"v_mfma_f32_16x16x32_bf16 {vr(136+4*t,4)}, {vr(f+4*t,4)}, {vr(ar,4)}, {vr(136+4*t,4)}" for t in range(4)]
            for x in merge(mf, other):
                a(x)
        else:
            kz = KZ[s % 3]
            p0 = AR + 4 * (k0 % NA)
            p1 = AR + 4 * ((k0 + 1) % NA)
            mf = [
                f"v_mfma_f32_16x16x32_bf16 v[200:203], {vr(kz,4)}, {vr(p0,4)}, 0",
                f"v_mfma_f32_16x16x32_bf16 v[204:207], {vr(kz+4,4)}, {vr(p0,4)}, 0",
                f"v_mfma_f32_16x16x32_bf16 v[208:211], {vr(kz+8,4)}, {vr(p1,4)}, 0",
                f"v_mfma_f32_16x16x32_bf16 v[212:215], {vr(kz+12,4)}, {vr(p1,4)}, 0",
            ]
            for x in merge(mf, other):
                a(x)
            a("""
            v_add_f32 v220, 0x358637bd, v204
            v_add_f32 v221, 0x358637bd, v212
            v_rcp_f32 v220, v220
            v_rcp_f32 v221, v221
            """)
            for r in range(4):
                a(f"v_mul_f32 v{200+r}, v{200+r}, v220")
            for r in range(4):
                a(f"v_mul_f32 v{208+r}, v{208+r}, v221")
            a("""
            v_cvt_pk_bf16_f32 v216, v200, v201
            v_cvt_pk_bf16_f32 v217, v202, v203
            v_cvt_pk_bf16_f32 v218, v208, v209
            v_cvt_pk_bf16_f32 v219, v210, v211
            """)
            for t in range(4):
                a(f"v_mfma_f32_16x16x32_bf16 {vr(152+4*t,4)}, {vr(f+4*t,4)}, v[216:219], {vr(152+4*t,4)}")
    stamp(a, 11)
    assert (35 % K2_NS + 1) * 8192 <= K2_SCR and K2_SCR + 4 * 17408 <= K2_LDS and not isatt(34) and not isatt(35)
    for t in range(4):
        a(f"ds_write_b128 v235, {vr(136+4*t,4)} offset:{64*t}")
        a(f"ds_write_b128 v235, {vr(152+4*t,4)} offset:{17408+64*t}")
    a("s_waitcnt lgkmcnt(0)")
    a("s_barrier")
    for arr in range(4):
        a(f"ds_read_b128 {vr(40+8*arr,4)}, v234 offset:{arr*17408}")
        a(f"ds_read_b128 {vr(44+8*arr,4)}, v234 offset:{arr*17408+16}")
    q.wait(["x", "b2"], lgkm=0)
    for j in range(4):
        a(f"""
        v_lshlrev_b32 v{72+2*j}, 16, v{32+j}
        v_and_b32 v{73+2*j}, 0xffff0000, v{32+j}
        v_lshlrev_b32 v{80+2*j}, 16, v{28+j}
        v_and_b32 v{81+2*j}, 0xffff0000, v{28+j}
        """)
    for e in range(8):
        a(f"v_add_f32 v{40+e}, v{40+e}, v{56+e}")
    for e in range(8):
        a(f"v_add_f32 v{48+e}, v{48+e}, v{64+e}")
    for e in range(8):
        a(f"v_add_f32 v{40+e}, v{40+e}, v{72+e}")
    for e in range(8):
        a(f"v_mul_f32_e64 v{88+e}, -v{40+e}, s55")
    for e in range(8):
        a(f"v_exp_f32 v{88+e}, v{88+e}")
    for e in range(8):
        a(f"v_add_f32 v{88+e}, 1.0, v{88+e}")
    for e in range(8):
        a(f"v_rcp_f32 v{88+e}, v{88+e}")
    for e in range(8):
        a(f"v_mul_f32 v{40+e}, v{40+e}, v{88+e}")
    for e in range(8):
        a(f"v_fma_f32 v{40+e}, v{40+e}, v{48+e}, v{80+e}")
    for j in range(4):
        a(f"v_cvt_pk_bf16_f32 v{96+j}, v{40+2*j}, v{41+2*j}")
    a("buffer_store_dwordx4 v[96:99], v232, s[64:67], 0 offen")
    stamp(a, 12)
    if PROF:
        a("s_waitcnt vmcnt(0)")
    stamp(a, 13)
    stamp(a, 15, True)
    stamp_flush(a, 1, 16)
    a("K2_END:")
    a("s_endpgm")
    a("CODE_END:")


def kd(name, nv):
    return f""".p2align 6
.amdhsa_kernel {name}
  .amdhsa_next_free_vgpr {nv}
  .amdhsa_next_free_sgpr 102
  .amdhsa_accum_offset {nv}
  .amdhsa_group_segment_fixed_size 0
  .amdhsa_kernarg_size 96
  .amdhsa_user_sgpr_count 2
  .amdhsa_user_sgpr_kernarg_segment_ptr 1
  .amdhsa_system_sgpr_workgroup_id_x 1
.end_amdhsa_kernel
"""


def main(out):
    a = Asm()
    a.raw(f"""; Two-launch implementation (generated by exp/gen.py; hand-designed assembly).
; @launch kernel=k1_kernel grid=(256,1,1) block=(512,1,1) lds={K1_LDS}
; @launch kernel=k2_kernel grid=(256,1,1) block=(512,1,1) lds={K2_LDS}
.amdgcn_target "amdgcn-amd-amdhsa--gfx950"
.text""")
    gen_k1(a)
    gen_k2(a)
    a.raw('.section .rodata,"a"\n' + kd("k1_kernel", 256) + kd("k2_kernel", 256))
    txt = a.finish()
    open(out, "w").write(txt)
    print("wrote", out, "lines", txt.count("\n"), "pads", a.npad)


if __name__ == "__main__":
    main(sys.argv[1] if len(sys.argv) > 1 else f"cdna_kernels/{NAME}.s")
```
